```python
import torch

def _softmax(x, axis=-1):
    return torch.softmax(x, dim=axis)
def _gelu(x):
    return torch.nn.functional.gelu(x, approximate="tanh")
def _silu(x):
    return torch.nn.functional.silu(x)
def _sigmoid(x):
    return torch.sigmoid(x)
def _layernorm(x, axis=-1, eps=1e-5):
    m = x.mean(dim=axis, keepdim=True)
    v = x.var(dim=axis, keepdim=True, unbiased=False)
    return (x - m) / torch.sqrt(v + eps)
def _scatter_add(tgt, idx, src, axis=0):
    return tgt.clone().index_add_(axis, idx, src)
def _segment_sum(src, seg, n):
    out = torch.zeros((n,) + src.shape[1:], dtype=src.dtype)
    return out.index_add_(0, seg, src)
def _pad(x, pw):
    flat = tuple(v for pair in reversed(pw) for v in pair)
    return torch.nn.functional.pad(x, flat)

kernel_name = 'sequential_preLN__gqa_block_cached__dense_activation_squared_relu__decode'

def setup_inputs():

    _w = (lambda a: (lambda t: t.to(torch.bfloat16) if t.is_floating_point() else t)(torch.as_tensor(a)))
    def _A_setup():
        B, Sq, D = 2, 1, 448
        Hq, Hkv, Sk, Dh = 16, 8, 32768, 256
        assert Hq % Hkv == 0, (Hq, Hkv)
        return {
            "x": _w((lambda *s: torch.randn(*s, dtype=torch.bfloat16) * 0.05)(B, Sq, D)),
            "k_cache": _w((lambda *s: torch.randn(*s, dtype=torch.bfloat16) * 3.2)(B, Hkv, Sk, Dh)),
            "v_cache": _w((lambda *s: torch.randn(*s, dtype=torch.bfloat16) * 0.4)(B, Hkv, Sk, Dh)),
            "wq": _w((lambda *s: torch.randn(*s, dtype=torch.bfloat16) * 3.2)(D, Hq * Dh) * (D ** -0.5)),
            "wo": _w((lambda *s: torch.randn(*s, dtype=torch.bfloat16) * 0.4)(Hq * Dh, D) * ((Hq * Dh) ** -0.5)),
        }
    _A_in = _A_setup()

    def _B_setup():
        B, S, D, F = 2, 1, 448, 1792
        return {
            "x": _w((lambda *s: torch.randn(*s, dtype=torch.bfloat16) * 0.05)(B, S, D)),
            "w1": _w((lambda *s: torch.randn(*s, dtype=torch.bfloat16) * 0.05)(D, F)),
            "b1": _w((lambda *s: torch.randn(*s, dtype=torch.bfloat16) * 0.8)(F)),
            "w2": _w((lambda *s: torch.randn(*s, dtype=torch.bfloat16) * 0.05)(F, D)),
            "b2": _w((lambda *s: torch.randn(*s, dtype=torch.bfloat16) * 3.2)(D)),
        }
    _B_in = _B_setup()

    return {
        "A_x": _A_in["x"],
        "A_k_cache": _A_in["k_cache"],
        "A_v_cache": _A_in["v_cache"],
        "A_wq": _A_in["wq"],
        "A_wo": _A_in["wo"],
        "B_x": _B_in["x"],
        "B_w1": _B_in["w1"],
        "B_b1": _B_in["b1"],
        "B_w2": _B_in["w2"],
        "B_b2": _B_in["b2"],
    }

def reference(A_x, A_k_cache, A_v_cache, A_wq, A_wo, B_x, B_w1, B_b1, B_w2, B_b2):
    def _A_ref(x, k_cache, v_cache, wq, wo):
        B, Sq, D = x.shape
        Hq, Dh = 16, 256
        Hkv = k_cache.shape[1]
        rep = Hq // Hkv
        q = (lambda x, *d: x.permute(*d))((x @ wq).reshape(B, Sq, Hq, Dh), 0, 2, 1, 3)
        k = (lambda x, n, axis: torch.repeat_interleave(x, n, dim=axis))(k_cache, rep, axis=1)
        v = (lambda x, n, axis: torch.repeat_interleave(x, n, dim=axis))(v_cache, rep, axis=1)
        scores = torch.einsum("bhqd,bhkd->bhqk", q, k) * (Dh ** -0.5)
        p = _softmax(scores, axis=-1)
        o = torch.einsum("bhqk,bhkd->bhqd", p, v)
        return (lambda x, *d: x.permute(*d))(o, 0, 2, 1, 3).reshape(B, Sq, Hq * Dh) @ wo

    def _B_ref(x, w1, b1, w2, b2):
        h = torch.einsum("bsd,df->bsf", x, w1) + b1
        zero = torch.zeros_like(h)
        r = torch.where(h > zero, h, zero)
        h = r * r
        out = torch.einsum("bsf,fd->bsd", h, w2) + b2
        return out

    x = A_x
    h = x + _A_ref(_layernorm(x, axis=-1), A_k_cache, A_v_cache, A_wq, A_wo)
    h2 = h + _B_ref(_layernorm(h, axis=-1), B_w1, B_b1, B_w2, B_b2)
    return h2
```

```python
import struct
import sys

NAME = "sequential_preLN__gqa_block_cached__dense_activation_squared_relu__decode"
KN = NAME + "_kernel"


def f32(x):
    return "0x%08x" % struct.unpack("<I", struct.pack("<f", x))[0]


PAIR = 1056
TILE = 8 * PAIR
SLOT = 4 * TILE
NSLOT = 4
RING_END = NSLOT * SLOT
PBUF = RING_END
WQS = RING_END
XN = WQS + 14336
QL = XN + 1792
HB = QL + 1024
FB = HB + 1792
RED = FB + 256
FLAGS = RED + 1024
LANDED = FLAGS
CONSUMED = FLAGS + 16
STAGE = FLAGS + 32
STATM = FLAGS + 64
STATL = FLAGS + 96
LDS_SIZE = FLAGS + 256
W2L = 57344

WS_EPOCH = 0
WS_QG = 0x1000
WS_ML = 0x10000
WS_OP = 0x20000
WS_A1 = 0x60000
WS_Y2 = 0x70000
WS_TS = 0x100000

TAGC = 0x9E3779B9
SPIN = 1 << 20

sX, sK, sV, sWQ, sWO, sW1, sB1 = 4, 6, 8, 10, 12, 16, 18
sW2, sB2, sOUT, sDBG, sWS = 20, 22, 24, 26, 28
sWAVE = 3
sKVH, sJ, sB, sSPLIT, sGRP, sREG, sU = 30, 31, 36, 37, 38, 39, 50
sSRD = 32
sEPOCH, sTAG, sTO = 51, 52, 53
sTS = 64


class Gen:
    def __init__(self, opt):
        self.L = []
        self.opt = opt
        self.uid = 0

    def __call__(self, s):
        for line in s.split("\n"):
            line = line.strip()
            if line:
                self.L.append(line if line.endswith(":") else "    " + line)

    def lab(self, base):
        self.uid += 1
        return f"L_{base}_{self.uid}"

    def ts(self, k):
        if self.opt.get("ts"):
            self(f"s_waitcnt lgkmcnt(0)\ns_memrealtime s[{sTS+2*k}:{sTS+2*k+1}]\ns_waitcnt lgkmcnt(0)")

    def ts_init(self):
        if self.opt.get("ts"):
            for k in range(16):
                self(f"s_mov_b64 s[{sTS+2*k}:{sTS+2*k+1}], 0")

    def endwave(self):
        if self.opt.get("ts"):
            self("s_branch L_dump")
        else:
            self("s_endpgm")

    def srd(self, ptr, size, off=None):
        if off is None:
            self(f"s_mov_b32 s{sSRD}, s{ptr}\ns_and_b32 s{sSRD+1}, s{ptr+1}, 0xffff")
        else:
            self(f"s_add_u32 s{sSRD}, s{ptr}, s{off}\ns_addc_u32 s{sSRD+1}, s{ptr+1}, 0\ns_and_b32 s{sSRD+1}, s{sSRD+1}, 0xffff")
        self(f"s_mov_b32 s{sSRD+2}, {size}\ns_mov_b32 s{sSRD+3}, 0x20000")

    def base(self, dst, ptr, const=0, off=None):
        self(f"s_add_u32 s{dst}, s{ptr}, {const}\ns_addc_u32 s{dst+1}, s{ptr+1}, 0")
        if off is not None:
            self(f"s_add_u32 s{dst}, s{dst}, s{off}\ns_addc_u32 s{dst+1}, s{dst+1}, 0")

    def mask(self, dst, pat16):
        v = pat16 | (pat16 << 16)
        self(f"s_mov_b32 s{dst}, 0x{v:08x}\ns_mov_b32 s{dst+1}, 0x{v:08x}")

    def lds_wait4(self, vzero, off, target, sseen, vt, sleep=1):
        top, done = self.lab("w4"), self.lab("w4d")
        self(f"""
        s_cmp_ge_u32 s{sseen}, {target}
        s_cbranch_scc1 {done}
        {top}:
        ds_read_b128 v[{vt}:{vt+3}], v{vzero} offset:{off - FLAGS}
        s_waitcnt lgkmcnt(0)
        v_min3_u32 v{vt}, v{vt}, v{vt+1}, v{vt+2}
        v_min_u32 v{vt}, v{vt}, v{vt+3}
        s_nop 0
        v_readfirstlane_b32 s{sseen}, v{vt}
        s_cmp_ge_u32 s{sseen}, {target}
        s_cbranch_scc1 {done}
        s_sleep {sleep}
        s_sub_u32 s{sTO}, s{sTO}, 1
        s_cbranch_scc0 {top}
        s_mov_b32 s{sTO}, 0
        {done}:""")

    def lds_wait1(self, vaddr, off, target, sseen, vt, sleep=1):
        top, done = self.lab("w1"), self.lab("w1d")
        self(f"""
        s_cmp_ge_u32 s{sseen}, {target}
        s_cbranch_scc1 {done}
        {top}:
        ds_read_b32 v{vt}, v{vaddr} offset:{off - FLAGS}
        s_waitcnt lgkmcnt(0)
        v_readfirstlane_b32 s{sseen}, v{vt}
        s_cmp_ge_u32 s{sseen}, {target}
        s_cbranch_scc1 {done}
        s_sleep {sleep}
        s_sub_u32 s{sTO}, s{sTO}, 1
        s_cbranch_scc0 {top}
        s_mov_b32 s{sTO}, 0
        {done}:""")

    def poll_tail(self, top, done, sleep):
        self(f"""
        s_cmp_eq_u64 vcc, 0
        s_cbranch_scc1 {done}
        s_mov_b64 exec, vcc
        s_sleep {sleep}
        s_sub_u32 s{sTO}, s{sTO}, 1
        s_cbranch_scc0 {top}
        s_mov_b32 s{sTO}, 0
        {done}:
        s_mov_b64 exec, -1""")

    def maxu_chain(self, dst, regs):
        regs = list(regs)
        first = True
        while regs:
            if first:
                a = regs[:3]; regs = regs[3:]
                if len(a) == 3:
                    self(f"v_max3_u32 v{dst}, v{a[0]}, v{a[1]}, v{a[2]}")
                else:
                    self(f"v_max_u32 v{dst}, v{a[0]}, v{a[1]}")
                first = False
            else:
                a = regs[:2]; regs = regs[2:]
                if len(a) == 2:
                    self(f"v_max3_u32 v{dst}, v{dst}, v{a[0]}, v{a[1]}")
                else:
                    self(f"v_max_u32 v{dst}, v{dst}, v{a[0]}")

    def xlane(self, op, v, vt, rors, s16, s32):
        for r in rors:
            self(f"s_nop 1\n{op}_dpp v{v}, v{v}, v{v} row_ror:{r} row_mask:0xf bank_mask:0xf")
        if s16:
            self(f"v_mov_b32 v{vt}, v{v}\ns_nop 1\nv_permlane16_swap_b32 v{v}, v{vt}\ns_nop 1\n{op} v{v}, v{v}, v{vt}")
        if s32:
            self(f"v_mov_b32 v{vt}, v{v}\ns_nop 1\nv_permlane32_swap_b32 v{v}, v{vt}\ns_nop 1\n{op} v{v}, v{v}, v{vt}")

    def rbf(self, v):
        self(f"v_cvt_pk_bf16_f32 v{v}, v{v}, v{v}\nv_and_b32 v{v}, 0xffff0000, v{v}")

    def ln_stats(self, vp, vx, vmu, vrs, vt):
        for j in range(7):
            self(f"v_lshlrev_b32 v{vx+2*j}, 16, v{vp+j}\nv_and_b32 v{vx+2*j+1}, 0xffff0000, v{vp+j}")
        self(f"v_add_f32 v{vmu}, v{vx}, v{vx+1}\nv_add_f32 v{vt}, v{vx+2}, v{vx+3}")
        for j in range(4, 14, 2):
            self(f"v_add_f32 v{vmu}, v{vmu}, v{vx+j}\nv_add_f32 v{vt}, v{vt}, v{vx+j+1}")
        self(f"v_add_f32 v{vmu}, v{vmu}, v{vt}")
        self.xlane("v_add_f32", vmu, vt, [1, 2, 4, 8], True, False)
        self(f"v_mul_f32 v{vmu}, {f32(1.0/448)}, v{vmu}")
        self(f"v_sub_f32 v{vt}, v{vx}, v{vmu}\nv_mul_f32 v{vrs}, v{vt}, v{vt}")
        for j in range(1, 14):
            self(f"v_sub_f32 v{vt}, v{vx+j}, v{vmu}\nv_fmac_f32 v{vrs}, v{vt}, v{vt}")
        self.xlane("v_add_f32", vrs, vt, [1, 2, 4, 8], True, False)
        self(f"v_mul_f32 v{vrs}, {f32(1.0/448)}, v{vrs}")
        self.rbf(vrs)
        self(f"v_add_f32 v{vrs}, {f32(1e-5)}, v{vrs}")
        self.rbf(vrs)
        self(f"v_sqrt_f32 v{vrs}, v{vrs}")
        self.rbf(vmu)
        self.rbf(vrs)
        self(f"v_rcp_f32 v{vrs}, v{vrs}\ns_nop 0")

    def ln_apply(self, va, vb, vmu, vrs, vout):
        self(f"""
        v_sub_f32 v{va}, v{va}, v{vmu}
        v_sub_f32 v{vb}, v{vb}, v{vmu}
        v_cvt_pk_bf16_f32 v{vout}, v{va}, v{vb}
        v_lshlrev_b32 v{va}, 16, v{vout}
        v_and_b32 v{vb}, 0xffff0000, v{vout}
        v_mul_f32 v{va}, v{va}, v{vrs}
        v_mul_f32 v{vb}, v{vb}, v{vrs}
        v_cvt_pk_bf16_f32 v{vout}, v{va}, v{vb}""")

    def select4(self, dst, acc, m):
        for r in range(4):
            self(f"v_cndmask_b32 v{dst+r}, v{acc+r}, v{acc+4+r}, s[{m}:{m+1}]")
        for r in range(4):
            self(f"v_cndmask_b32 v{dst+r}, v{dst+r}, v{acc+8+r}, s[{m+2}:{m+3}]")
        for r in range(4):
            self(f"v_cndmask_b32 v{dst+r}, v{dst+r}, v{acc+12+r}, s[{m+4}:{m+5}]")

    def prefetch_code(self, vt):
        pc = self.lab("pc")
        self(f"""
        s_getpc_b64 s[62:63]
        {pc}:
        s_sub_u32 s62, s62, {pc}-{KN}
        s_subb_u32 s63, s63, 0
        v_lshlrev_b32 v{vt}, 7, v0
        v_min_u32 v{vt+1}, L_code_end-{KN}-4, v{vt}
        global_load_dword v206, v{vt+1}, s[62:63]
        v_add_u32 v{vt}, 8192, v{vt}
        v_min_u32 v{vt+1}, L_code_end-{KN}-4, v{vt}
        global_load_dword v207, v{vt+1}, s[62:63]""")


def gen(opt):
    g = Gen(opt)
    W = opt.get("W", [4] * 8)
    wpol = opt.get("wpol", "")
    qpol = opt.get("qpol", "")
    vF = 2

    g(f"""
    s_cmp_ge_u32 s2, 256
    s_cbranch_scc1 L_exit
    s_load_dwordx16 s[4:19], s[0:1], 0
    s_load_dwordx8 s[20:27], s[0:1], 64
    s_load_dwordx2 s[28:29], s[0:1], 96""")
    g.ts_init()
    if opt.get("ts"):
        g(f"s_memrealtime s[{sTS}:{sTS+1}]")
    g(f"""
    v_lshrrev_b32 v1, 6, v0
    v_and_b32 v0, 63, v0
    v_readfirstlane_b32 s{sWAVE}, v1
    v_mov_b32 v{vF}, {FLAGS}
    v_lshl_add_u32 v3, v0, 2, v{vF}
    v_mov_b32 v4, 0
    ds_write_b32 v3, v4
    s_and_b32 s{sKVH}, s2, 7
    s_lshr_b32 s{sJ}, s2, 3
    s_lshr_b32 s{sB}, s{sJ}, 4
    s_and_b32 s{sSPLIT}, s{sJ}, 15
    s_lshl_b32 s{sGRP}, s{sB}, 3
    s_add_u32 s{sGRP}, s{sGRP}, s{sKVH}
    s_lshl_b32 s{sREG}, s{sGRP}, 4
    s_add_u32 s{sREG}, s{sREG}, s{sSPLIT}
    s_lshl_b32 s{sU}, s{sGRP}, 1
    s_add_u32 s{sU}, s{sU}, s{sSPLIT}
    s_sub_u32 s{sU}, s{sU}, 14
    s_mov_b32 s{sTO}, {SPIN}
    v_lshlrev_b32 v1, 4, v0
    s_lshl_b32 s44, s{sREG}, 20
    s_waitcnt lgkmcnt(0)
    s_barrier
    s_cmp_ge_u32 s{sWAVE}, 4
    s_cbranch_scc1 L_consumer""")

    g("s_setprio 3")
    g.srd(sK, 1 << 20, 44)
    g(f"""
    s_mov_b32 s40, 0
    s_lshl_b32 s41, s{sWAVE}, 13
    s_mul_i32 s47, s{sWAVE}, {TILE}
    s_mov_b32 s46, 0
    s_mov_b32 s45, 0
    s_lshl_b32 s43, s{sWAVE}, 2
    v_add_u32 v3, s43, v{vF}
    L_row:
    s_add_u32 s42, s46, s47""")
    published = False
    for j in range(8):
        g(f"""
        s_add_u32 m0, s42, {j*PAIR}
        s_add_u32 s43, s41, {j*1024}
        buffer_load_dwordx4 v1, s[{sSRD}:{sSRD+3}], s43 offen nt lds""")
        if j == 7:
            g(f"ds_read_b128 v[8:11], v{vF} offset:{CONSUMED-FLAGS}")
        g(f"s_waitcnt vmcnt({W[j]})")
        if not published and j + 1 >= W[j]:
            g(f"v_mov_b32 v4, s40\nds_write_b32 v3, v4 offset:{LANDED-FLAGS}")
            published = True
    assert published
    g(f"""
    s_add_u32 s40, s40, 1
    s_add_u32 s41, s41, 32768
    s_add_u32 s46, s46, {SLOT}
    s_cmp_eq_u32 s46, {RING_END}
    s_cselect_b32 s46, 0, s46
    s_waitcnt lgkmcnt(0)
    v_min3_u32 v8, v8, v9, v10
    v_min_u32 v8, v8, v11
    s_sub_u32 s48, s40, {NSLOT-1}
    v_readfirstlane_b32 s45, v8
    s_max_i32 s48, s48, 0""")
    g.lds_wait4(vF, CONSUMED, "s48", 45, 8)
    g(f"""
    s_cmp_eq_u32 s40, 32
    s_cbranch_scc0 L_row_nosw""")
    g.ts(1)
    g.srd(sV, 1 << 20, 44)
    g(f"""
    s_lshl_b32 s41, s{sWAVE}, 13
    L_row_nosw:
    s_cmp_lt_u32 s40, 64
    s_cbranch_scc1 L_row""")
    g(f"""
    v_mov_b32 v4, 64
    s_cmp_lt_u32 s{sSPLIT}, 14
    s_cbranch_scc0 L_ld_not_t1""")
    g.srd(sWO, 4096 * 896)
    g(f"""
    v_lshrrev_b32 v5, 2, v0
    v_mul_u32_u24 v5, 896, v5
    v_and_b32 v6, 3, v0
    v_lshl_add_u32 v5, v6, 4, v5
    s_lshl_b32 s41, s{sKVH}, 2
    s_add_u32 s41, s41, s{sWAVE}
    s_mul_i32 s41, s41, {128*896}
    s_lshl_b32 s43, s{sSPLIT}, 6
    s_add_u32 s41, s41, s43
    s_lshl_b32 s42, s{sWAVE}, 13""")
    for j in range(8):
        g(f"""
        s_add_u32 m0, s42, {j*1024}
        s_add_u32 s43, s41, {j*16*896}
        buffer_load_dwordx4 v5, s[{sSRD}:{sSRD+3}], s43 offen {wpol} lds""")
    g(f"""
    s_waitcnt vmcnt(8)
    ds_write_b32 v3, v4 offset:{LANDED-FLAGS}""")
    g.ts(2)
    g(f"""
    s_waitcnt vmcnt(0)
    s_branch L_t1
    L_ld_not_t1:
    s_cmp_lt_u32 s{sU}, 28
    s_cbranch_scc1 L_ld_t2
    s_waitcnt vmcnt(0)
    ds_write_b32 v3, v4 offset:{LANDED-FLAGS}""")
    g.ts(2)
    g.endwave()
    g("L_ld_t2:")
    g.srd(sW1, 448 * 3584)
    g(f"""
    v_lshrrev_b32 v5, 3, v0
    v_mul_u32_u24 v5, 3584, v5
    v_and_b32 v6, 7, v0
    v_lshl_add_u32 v5, v6, 4, v5
    s_mul_i32 s41, s{sWAVE}, {7*8*3584}
    s_lshl_b32 s43, s{sU}, 7
    s_add_u32 s41, s41, s43
    s_mul_i32 s42, s{sWAVE}, {7*1024}""")
    for row in range(2):
        if row:
            g.lds_wait4(vF, CONSUMED, 62, 45, 8)
        for j in range(7):
            idx = row * 28 + j
            g(f"""
            s_add_u32 m0, s42, {idx*1024}
            s_add_u32 s43, s41, {idx*8*3584}
            buffer_load_dwordx4 v5, s[{sSRD}:{sSRD+3}], s43 offen {wpol} lds""")
        if row == 0:
            g(f"s_waitcnt vmcnt(7)\nds_write_b32 v3, v4 offset:{LANDED-FLAGS}")
            g.ts(2)
    g.srd(sW2, 1792 * 896)
    g(f"""
    s_mul_i32 s41, s{sU}, {64*896}
    s_add_u32 s41, s41, s42""")
    for row in range(2):
        g.lds_wait4(vF, CONSUMED, 63 + row, 45, 8)
        for j in range(7):
            idx = row * 28 + j
            g(f"""
            s_add_u32 m0, s42, {W2L + idx*1024}
            s_add_u32 s43, s41, {idx*1024}
            buffer_load_dwordx4 v1, s[{sSRD}:{sSRD+3}], s43 offen {wpol} lds""")
    g("s_waitcnt vmcnt(0)\ns_branch L_t2")

    sC = 47
    sSEEN, sSTG = 45, 46
    g(f"""
    L_consumer:
    s_load_dword s{sEPOCH}, s[{sWS}:{sWS+1}], {WS_EPOCH}
    s_sub_u32 s{sC}, s{sWAVE}, 4
    s_lshl_b32 s43, s{sC}, 2
    v_add_u32 v3, s43, v{vF}
    v_lshrrev_b32 v5, 4, v0
    v_and_b32 v6, 1, v0
    s_mov_b32 s{sSEEN}, 0
    s_mov_b32 s{sSTG}, 0
    s_cmp_eq_u32 s{sC}, 0
    s_cbranch_scc1 L_qprod
    s_cmp_eq_u32 s{sC}, 1
    s_cbranch_scc0 L_qwait""")
    g.prefetch_code(8)
    g("s_branch L_qwait")

    g(f"""
    L_qprod:
    v_lshrrev_b32 v7, 5, v0
    v_mul_u32_u24 v7, 896, v7
    v_and_b32 v8, 31, v0
    v_lshl_add_u32 v7, v8, 2, v7""")
    for j in range(7):
        g(f"global_load_dword v{16+j}, v7, s[{sX}:{sX+1}] offset:{128*j}")
    g.srd(sWQ, 448 * 8192)
    g(f"""
    v_lshrrev_b32 v9, 1, v0
    v_lshlrev_b32 v9, 13, v9
    v_lshl_add_u32 v9, v6, 4, v9
    s_lshl_b32 s41, s{sKVH}, 10
    s_lshl_b32 s43, s{sJ}, 5
    s_add_u32 s41, s41, s43""")
    for j in range(14):
        g(f"""
        s_mov_b32 m0, {WQS + j*1024}
        s_add_u32 s43, s41, {j*32*8192}
        buffer_load_dwordx4 v9, s[{sSRD}:{sSRD+3}], s43 offen {qpol} lds""")
    g(f"""
    v_mov_b32 v12, -1
    v_mov_b32 v13, -1
    v_mov_b32 v14, -1
    v_mov_b32 v15, -1
    s_lshl_b32 s43, s{sREG}, 10""")
    g.base(54, sWS, WS_OP, 43)
    g(f"global_store_dwordx4 v1, v[12:15], s[54:55] sc1")
    g(f"s_lshl_b32 s43, s{sREG}, 4")
    g.base(56, sWS, WS_ML, 43)
    g(f"""
    s_mov_b64 exec, 1
    global_store_dwordx4 v1, v[12:15], s[56:57] sc1
    s_mov_b64 exec, -1
    s_cmp_lt_u32 s{sSPLIT}, 14
    s_cbranch_scc0 L_clr_not_t1
    s_lshl_b32 s43, s{sKVH}, 1
    s_add_u32 s43, s43, s{sB}
    s_mul_i32 s43, s43, 1792
    s_lshl_b32 s41, s{sSPLIT}, 7
    s_add_u32 s43, s43, s41""")
    g.base(58, sWS, WS_A1, 43)
    g(f"""
    s_mov_b64 exec, 0xff
    global_store_dwordx4 v1, v[12:15], s[58:59] sc1
    s_mov_b64 exec, -1
    s_waitcnt vmcnt(17)
    s_branch L_clr_done
    L_clr_not_t1:
    s_mul_i32 s43, s{sU}, 3584""")
    g.base(58, sWS, WS_Y2, 43)
    g(f"""
    global_store_dwordx4 v1, v[12:15], s[58:59] sc1
    global_store_dwordx4 v1, v[12:15], s[58:59] offset:1024 sc1
    global_store_dwordx4 v1, v[12:15], s[58:59] offset:2048 sc1
    global_store_dwordx4 v1, v[12:15], s[58:59] offset:2560 sc1
    s_waitcnt vmcnt(20)
    L_clr_done:""")
    g.ts(1)
    g.ln_stats(16, 24, 10, 11, 12)
    g(f"v_add_u32 v7, {XN}, v7")
    for j in range(7):
        g.ln_apply(24 + 2*j, 25 + 2*j, 10, 11, 16 + j)
        g(f"ds_write_b32 v7, v{16+j} offset:{128*j}")
    g(f"""
    v_mul_u32_u24 v8, 896, v6
    v_lshl_add_u32 v8, v5, 4, v8
    v_add_u32 v8, {XN}, v8
    v_bfe_u32 v9, v0, 2, 2
    v_lshl_add_u32 v9, v5, 3, v9
    v_lshlrev_b32 v9, 5, v9
    v_and_b32 v10, 3, v0
    v_lshl_add_u32 v9, v10, 3, v9
    v_add_u32 v9, {WQS}, v9""")
    for j in range(14):
        g(f"ds_read_b128 v[{64+4*j}:{67+4*j}], v8 offset:{64*j}")
    g("s_waitcnt vmcnt(0)")
    g.ts(2)
    for j in range(14):
        g(f"ds_read_b64_tr_b16 v[{128+4*j}:{129+4*j}], v9 offset:{1024*j}")
        g(f"ds_read_b64_tr_b16 v[{130+4*j}:{131+4*j}], v9 offset:{1024*j+128}")
    g(f"""
    s_lshl_b32 s43, s{sKVH}, 11
    s_lshl_b32 s41, s{sJ}, 6
    s_add_u32 s43, s43, s41""")
    g.base(60, sWS, WS_QG, 43)
    g(f"""
    v_lshlrev_b32 v10, 14, v6
    v_lshl_add_u32 v10, v5, 4, v10
    s_waitcnt lgkmcnt(0)
    s_add_u32 s{sTAG}, s{sEPOCH}, 0x{TAGC:08x}""")
    for j in range(14):
        c = "0" if j == 0 else "v[12:15]"
        g(f"v_mfma_f32_16x16x32_bf16 v[12:15], v[{128+4*j}:{131+4*j}], v[{64+4*j}:{67+4*j}], {c}")
    g(f"""
    v_mov_b32 v17, s{sTAG}
    v_mov_b32 v19, s{sTAG}
    s_mov_b32 exec_lo, 0x00030003
    s_mov_b32 exec_hi, 0x00030003
    s_nop 4
    v_cvt_pk_bf16_f32 v16, v12, v13
    v_cvt_pk_bf16_f32 v18, v14, v15
    global_store_dwordx4 v10, v[16:19], s[60:61] sc1
    s_mov_b64 exec, -1
    s_lshl_b32 s43, s{sGRP}, 11""")
    g.ts(3)
    g.base(60, sWS, WS_QG, 43)
    top, done = g.lab("qpoll"), g.lab("qdone")
    g(f"""
    {top}:
    global_load_dwordx4 v[20:23], v1, s[60:61] sc1
    global_load_dwordx4 v[24:27], v1, s[60:61] offset:1024 sc1
    s_waitcnt vmcnt(0)
    v_xor_b32 v28, s{sTAG}, v21
    v_xor_b32 v29, s{sTAG}, v23
    v_xor_b32 v30, s{sTAG}, v25
    v_xor_b32 v31, s{sTAG}, v27
    v_or3_b32 v28, v28, v29, v30
    v_or_b32 v28, v28, v31
    v_cmp_ne_u32 vcc, 0, v28""")
    g.poll_tail(top, done, 2)
    g(f"""
    v_mov_b32 v21, v22
    v_mov_b32 v25, v26
    v_lshlrev_b32 v8, 3, v0
    v_add_u32 v8, {QL}, v8
    v_mov_b32 v4, 1
    ds_write_b64 v8, v[20:21]
    ds_write_b64 v8, v[24:25] offset:512
    ds_write_b32 v3, v4 offset:{STAGE-FLAGS}""")
    g.ts(4)
    g("L_qwait:")
    g.lds_wait1(vF, STAGE, 1, sSTG, 8)
    vQ, vA, vD, vS = 32, 64, 96, 100
    g(f"""
    v_lshlrev_b32 v8, 9, v6
    v_lshl_add_u32 v8, v5, 4, v8
    v_add_u32 v8, {QL}, v8""")
    for i in range(8):
        g(f"ds_read_b128 v[{vQ+4*i}:{vQ+4*i+3}], v8 offset:{64*i}")
    g(f"""
    v_and_b32 v8, 7, v0
    v_mul_u32_u24 v8, {PAIR}, v8
    v_bfe_u32 v9, v0, 3, 1
    v_lshl_add_u32 v8, v9, 9, v8
    v_lshl_add_u32 v8, v5, 4, v8
    s_mul_i32 s43, s{sC}, {TILE}
    v_add_u32 v9, s43, v8
    s_mov_b32 s40, 0
    s_mov_b32 s42, 0
    s_waitcnt lgkmcnt(0)
    s_add_u32 s{sTAG}, s{sEPOCH}, 0x{TAGC:08x}""")
    for G in range(4):
        top = g.lab("krow")
        g.mask(48, 0x0003)
        g(f"""
        {top}:
        s_add_u32 s40, s40, 1""")
        g.lds_wait1(3, LANDED, "s40", sSEEN, 10)
        g(f"v_add_u32 v8, s42, v9\nv_mov_b32 v4, s40")
        for i in range(8):
            g(f"ds_read_b128 v[{vA+4*i}:{vA+4*i+3}], v8 offset:{64*i}")
        g(f"""
        ds_write_b32 v3, v4 offset:{CONSUMED-FLAGS}
        s_add_u32 s42, s42, {SLOT}
        s_cmp_eq_u32 s42, {RING_END}
        s_cselect_b32 s42, 0, s42""")
        for i in range(8):
            c = "0" if i == 0 else f"v[{vD}:{vD+3}]"
            g(f"s_waitcnt lgkmcnt({8-i})")
            g(f"v_mfma_f32_16x16x32_bf16 v[{vD}:{vD+3}], v[{vA+4*i}:{vA+4*i+3}], v[{vQ+4*i}:{vQ+4*i+3}], {c}")
        g("s_nop 7")
        for r in range(4):
            g(f"v_cndmask_b32 v{vS+4*G+r}, v{vS+4*G+r}, v{vD+r}, s[48:49]")
        g(f"""
        s_lshl_b64 s[48:49], s[48:49], 2
        s_and_b32 s43, s40, 7
        s_cbranch_scc1 {top}""")
    g.ts(5)
    for i in range(8):
        g(f"v_cvt_pk_bf16_f32 v{vA+i}, v{vS+2*i}, v{vS+2*i+1}")
    for i in range(8):
        g(f"v_lshlrev_b32 v{vS+2*i}, 16, v{vA+i}\nv_and_b32 v{vS+2*i+1}, 0xffff0000, v{vA+i}")
    vM, vL = 12, 13
    g(f"v_max3_f32 v{vM}, v{vS}, v{vS+1}, v{vS+2}")
    for i in range(3, 15, 2):
        g(f"v_max3_f32 v{vM}, v{vM}, v{vS+i}, v{vS+i+1}")
    g(f"v_max_f32 v{vM}, v{vM}, v{vS+15}")
    g.xlane("v_max_f32", vM, 10, [2, 4, 8], True, True)
    g(f"""
    v_lshl_add_u32 v14, v6, 4, v3
    v_lshl_add_u32 v15, v6, 4, v{vF}
    v_mov_b32 v4, 2
    ds_write_b32 v14, v{vM} offset:{STATM-FLAGS}
    ds_write_b32 v3, v4 offset:{STAGE-FLAGS}""")
    g.lds_wait4(vF, STAGE, 2, sSTG, 16)
    g(f"""
    ds_read_b128 v[16:19], v15 offset:{STATM-FLAGS}
    s_mov_b32 s43, {f32(1.4426950408889634/16)}
    s_waitcnt lgkmcnt(0)
    v_max3_f32 v{vM}, v16, v17, v18
    v_max_f32 v{vM}, v{vM}, v19""")
    for i in range(16):
        g(f"v_sub_f32 v{vS+i}, v{vS+i}, v{vM}")
    for i in range(16):
        g(f"v_mul_f32 v{vS+i}, s43, v{vS+i}")
    for i in range(16):
        g(f"v_exp_f32 v{vS+i}, v{vS+i}")
    g(f"v_add_f32 v{vL}, v{vS}, v{vS+1}\nv_add_f32 v10, v{vS+2}, v{vS+3}")
    for i in range(4, 16, 2):
        g(f"v_add_f32 v{vL}, v{vL}, v{vS+i}\nv_add_f32 v10, v10, v{vS+i+1}")
    g(f"v_add_f32 v{vL}, v{vL}, v10")
    g.xlane("v_add_f32", vL, 10, [2, 4, 8], True, True)
    for i in range(8):
        g(f"v_cvt_pk_bf16_f32 v{vA+i}, v{vS+2*i}, v{vS+2*i+1}")
    g(f"""
    v_bfe_u32 v8, v0, 1, 3
    v_lshlrev_b32 v8, 8, v8
    v_lshl_add_u32 v8, v6, 6, v8
    v_lshl_add_u32 v8, v5, 4, v8
    s_lshr_b32 s43, s{sC}, 1
    s_lshl_b32 s43, s43, 7
    s_and_b32 s41, s{sC}, 1
    s_lshl_b32 s41, s41, 3
    s_add_u32 s43, s43, s41
    s_add_u32 s43, s43, {PBUF}
    v_add_u32 v8, s43, v8
    v_mov_b32 v4, 3
    ds_write_b32 v14, v{vL} offset:{STATL-FLAGS}""")
    for G in range(4):
        g(f"ds_write_b64 v8, v[{vA+2*G}:{vA+2*G+1}] offset:{G*2048}")
    g(f"ds_write_b32 v3, v4 offset:{STAGE-FLAGS}")
    g.lds_wait4(vF, STAGE, 3, sSTG, 16)
    g(f"""
    ds_read_b128 v[16:19], v15 offset:{STATL-FLAGS}
    s_waitcnt lgkmcnt(0)
    v_add_f32 v16, v16, v17
    v_add_f32 v18, v18, v19
    v_add_f32 v{vL}, v16, v18
    s_cmp_eq_u32 s{sC}, 0
    s_cbranch_scc0 L_no_ml
    s_lshl_b32 s43, s{sREG}, 4""")
    g.base(56, sWS, WS_ML, 43)
    g(f"""
    v_lshlrev_b32 v8, 3, v0
    s_mov_b64 exec, 3
    global_store_dwordx2 v8, v[{vM}:{vL}], s[56:57] sc1
    s_mov_b64 exec, -1
    L_no_ml:""")
    g.ts(6)
    vP, vO = 32, 116
    g(f"""
    v_bfe_u32 v8, v0, 2, 3
    v_mul_u32_u24 v8, {PAIR}, v8
    v_lshrrev_b32 v9, 5, v0
    v_lshl_add_u32 v8, v9, 9, v8
    v_and_b32 v9, 3, v0
    v_lshl_add_u32 v8, v9, 3, v8
    s_lshl_b32 s43, s{sC}, 7
    v_add_u32 v9, s43, v8
    v_lshlrev_b32 v11, 6, v6
    v_lshl_add_u32 v11, v5, 4, v11
    v_add_u32 v11, {PBUF}, v11
    s_mov_b32 s{sSEEN}, 0""")
    for r in range(16):
        g(f"v_mov_b32 v{vO+r}, 0")

    def vloop(end):
        top = g.lab("vrow")
        g(f"""
        {top}:
        s_add_u32 s40, s40, 1""")
        g.lds_wait4(vF, LANDED, "s40", sSEEN, 16)
        g(f"v_add_u32 v8, s42, v9\nv_mov_b32 v4, s40")
        n = 0
        for pr in range(2):
            g(f"ds_read_b128 v[{vP+4*pr}:{vP+4*pr+3}], v11 offset:{128*pr}")
            for T in range(4):
                a = vA + 16*pr + 4*T
                g(f"ds_read_b64_tr_b16 v[{a}:{a+1}], v8 offset:{(2*pr)*TILE + 32*T}")
                g(f"ds_read_b64_tr_b16 v[{a+2}:{a+3}], v8 offset:{(2*pr+1)*TILE + 32*T}")
            if pr == 0:
                pass
        g(f"""
        ds_write_b32 v3, v4 offset:{CONSUMED-FLAGS}
        v_add_u32 v11, 256, v11
        s_add_u32 s42, s42, {SLOT}
        s_cmp_eq_u32 s42, {RING_END}
        s_cselect_b32 s42, 0, s42""")
        for pr in range(2):
            for T in range(4):
                a = vA + 16*pr + 4*T
                need = 9*pr + 1 + 2*(T+1)
                g(f"s_waitcnt lgkmcnt({min(19-need, 15)})")
                g(f"v_mfma_f32_16x16x32_bf16 v[{vO+4*T}:{vO+4*T+3}], v[{a}:{a+3}], v[{vP+4*pr}:{vP+4*pr+3}], v[{vO+4*T}:{vO+4*T+3}]")
        g(f"""
        s_cmp_lt_u32 s40, {end}
        s_cbranch_scc1 {top}""")

    vloop(48)
    vWt = 14
    g(f"s_lshl_b32 s43, s{sGRP}, 8")
    g.base(56, sWS, WS_ML, 43)
    top, done = g.lab("mlpoll"), g.lab("mldone")
    g(f"""
    v_and_b32 v16, 15, v0
    v_lshlrev_b32 v16, 4, v16
    v_and_b32 v17, 1, v5
    v_lshl_add_u32 v16, v17, 3, v16
    {top}:
    global_load_dwordx2 v[18:19], v16, s[56:57] sc1
    s_waitcnt vmcnt(0)
    v_max_u32 v20, v18, v19
    v_cmp_eq_u32 vcc, -1, v20""")
    g.poll_tail(top, done, 4)
    g(f"v_mov_b32 v20, v18")
    g.xlane("v_max_f32", 20, 21, [1, 2, 4, 8], False, False)
    g(f"""
    s_mov_b32 s43, {f32(1.4426950408889634/16)}
    v_sub_f32 v18, v18, v20
    v_mul_f32 v18, s43, v18
    v_exp_f32 v18, v18
    s_nop 0
    v_mul_f32 v19, v18, v19""")
    g.xlane("v_add_f32", 19, 21, [1, 2, 4, 8], False, False)
    g(f"""
    v_rcp_f32 v19, v19
    s_add_u32 s41, s{sSPLIT}, 16
    v_mul_f32 v18, v18, v19
    s_nop 0
    v_readlane_b32 s48, v18, s{sSPLIT}
    v_readlane_b32 s49, v18, s41
    v_cmp_eq_u32 vcc, 1, v6
    v_mov_b32 v{vWt}, s48
    v_mov_b32 v21, s49
    v_cndmask_b32 v{vWt}, v{vWt}, v21, vcc""")
    g(f"""
    s_cmp_lt_u32 s{sSPLIT}, 14
    s_cbranch_scc1 L_no_tagchk
    s_cmp_eq_u32 s{sC}, 0
    s_cbranch_scc0 L_no_tagchk""")
    g.base(56, sWS, WS_QG)
    top, done = g.lab("tpoll"), g.lab("tdone")
    g(f"""
    v_lshlrev_b32 v16, 8, v0
    {top}:
    global_load_dword v18, v16, s[56:57] offset:4 sc1
    global_load_dword v19, v16, s[56:57] offset:68 sc1
    global_load_dword v20, v16, s[56:57] offset:132 sc1
    global_load_dword v21, v16, s[56:57] offset:196 sc1
    s_waitcnt vmcnt(0)
    v_xor_b32 v18, s{sTAG}, v18
    v_xor_b32 v19, s{sTAG}, v19
    v_xor_b32 v20, s{sTAG}, v20
    v_xor_b32 v21, s{sTAG}, v21
    v_or3_b32 v18, v18, v19, v20
    v_or_b32 v18, v18, v21
    v_cmp_ne_u32 vcc, 0, v18""")
    g.poll_tail(top, done, 4)
    g(f"""
    L_no_tagchk:
    s_cmp_eq_u32 s{sC}, 1
    s_cbranch_scc0 L_no_pf2""")
    g.prefetch_code(16)
    g("L_no_pf2:")
    g.mask(54, 0x0c0c); g.mask(56, 0x3030); g.mask(58, 0xc0c0)
    g(f"""
    s_lshl_b32 s43, s{sREG}, 10
    s_lshl_b32 s41, s{sC}, 7
    s_add_u32 s43, s43, s41""")
    g.base(60, sWS, WS_OP, 43)
    g(f"""
    v_bfe_u32 v15, v0, 1, 2
    v_lshlrev_b32 v15, 5, v15
    v_lshl_add_u32 v15, v6, 9, v15
    v_lshl_add_u32 v15, v5, 3, v15""")
    vloop(64)
    g.ts(7)
    g("s_nop 4")
    g.select4(16, vO, 54)
    g(f"""
    s_mov_b32 exec_lo, 0x00ff00ff
    s_mov_b32 exec_hi, 0x00ff00ff
    v_mul_f32 v16, v16, v{vWt}
    v_mul_f32 v17, v17, v{vWt}
    v_mul_f32 v18, v18, v{vWt}
    v_mul_f32 v19, v19, v{vWt}
    v_cvt_pk_bf16_f32 v16, v16, v17
    v_cvt_pk_bf16_f32 v17, v18, v19
    global_store_dwordx2 v15, v[16:17], s[60:61] sc1
    s_mov_b64 exec, -1
    s_cmp_lt_u32 s{sSPLIT}, 14
    s_cbranch_scc1 L_t1
    s_cmp_lt_u32 s{sU}, 28
    s_cbranch_scc1 L_t2""")
    g.endwave()

    g(f"""
    L_t1:
    s_setprio 0
    v_lshrrev_b32 v5, 4, v0
    v_bfe_u32 v8, v0, 2, 2
    v_lshl_add_u32 v8, v5, 3, v8
    v_lshlrev_b32 v8, 6, v8
    v_and_b32 v9, 3, v0
    v_lshl_add_u32 v8, v9, 3, v8
    s_lshl_b32 s43, s{sWAVE}, 12
    v_add_u32 v8, s43, v8
    v_and_b32 v9, 15, v0
    v_lshlrev_b32 v10, 10, v9
    v_lshl_add_u32 v10, v5, 4, v10
    s_lshl_b32 s43, s{sGRP}, 14
    s_lshl_b32 s41, s{sWAVE}, 7
    s_add_u32 s43, s43, s41""")
    g.base(60, sWS, WS_OP, 43)
    g("s_waitcnt lgkmcnt(0)\ns_barrier")
    g.ts(8)
    for ks in range(2):
        for nt in range(2):
            a = 32 + 8*ks + 4*nt
            g(f"ds_read_b64_tr_b16 v[{a}:{a+1}], v8 offset:{ks*2048 + nt*32}")
            g(f"ds_read_b64_tr_b16 v[{a+2}:{a+3}], v8 offset:{ks*2048 + nt*32 + 256}")
    top, done = g.lab("opoll"), g.lab("odone")
    g(f"""
    {top}:
    global_load_dwordx4 v[16:19], v10, s[60:61] sc1
    global_load_dwordx4 v[20:23], v10, s[60:61] offset:64 sc1
    s_waitcnt vmcnt(0)""")
    g.maxu_chain(24, range(16, 24))
    g(f"v_cmp_eq_u32 vcc, -1, v24")
    g.poll_tail(top, done, opt.get("sl1", 1))
    g.ts(9)
    g(f"""
    s_waitcnt lgkmcnt(0)
    v_mfma_f32_16x16x32_bf16 v[24:27], v[16:19], v[32:35], 0
    v_mfma_f32_16x16x32_bf16 v[28:31], v[16:19], v[36:39], 0
    v_mfma_f32_16x16x32_bf16 v[24:27], v[20:23], v[40:43], v[24:27]
    v_mfma_f32_16x16x32_bf16 v[28:31], v[20:23], v[44:47], v[28:31]
    v_lshrrev_b32 v12, 5, v0
    v_lshl_add_u32 v12, v12, 4, v9
    v_lshlrev_b32 v12, 5, v12
    s_lshl_b32 s43, s{sWAVE}, 2
    s_add_u32 s43, s43, {RED}
    v_add_u32 v12, s43, v12
    s_nop 1
    v_add_f32 v24, v24, v25
    v_add_f32 v26, v26, v27
    v_add_f32 v28, v28, v29
    v_add_f32 v30, v30, v31
    v_add_f32 v24, v24, v26
    v_add_f32 v28, v28, v30
    s_nop 1
    v_permlane32_swap_b32 v24, v28
    s_nop 1
    v_add_f32 v24, v24, v28""")
    g.xlane("v_add_f32", 24, 25, [], True, False)
    g(f"""
    ds_write_b32 v12, v24
    s_lshl_b32 s43, s{sKVH}, 1
    s_add_u32 s43, s43, s{sB}
    s_mul_i32 s43, s43, 1792
    s_lshl_b32 s41, s{sSPLIT}, 7
    s_add_u32 s43, s43, s41""")
    g.base(58, sWS, WS_A1, 43)
    g(f"""
    v_and_b32 v13, 31, v0
    v_lshlrev_b32 v12, 5, v13
    v_add_u32 v12, {RED}, v12
    v_lshlrev_b32 v13, 2, v13
    s_waitcnt lgkmcnt(0)
    s_barrier
    s_cmp_eq_u32 s{sWAVE}, 0
    s_cbranch_scc0 L_t1_end
    ds_read_b128 v[16:19], v12
    ds_read_b128 v[20:23], v12 offset:16
    s_mov_b32 exec_hi, 0
    s_waitcnt lgkmcnt(0)
    v_add_f32 v16, v16, v17
    v_add_f32 v18, v18, v19
    v_add_f32 v20, v20, v21
    v_add_f32 v22, v22, v23
    v_add_f32 v16, v16, v18
    v_add_f32 v20, v20, v22
    v_add_f32 v16, v16, v20
    global_store_dword v13, v16, s[58:59] sc1
    s_mov_b64 exec, -1
    L_t1_end:""")
    g.ts(10)
    g.endwave()

    vW1, vW2, vH = 64, 120, 152
    g(f"""
    L_t2:
    s_setprio 0
    v_lshrrev_b32 v5, 4, v0
    v_and_b32 v6, 1, v0
    v_bfe_u32 v8, v0, 2, 2
    v_lshl_add_u32 v8, v5, 3, v8
    v_and_b32 v9, 3, v0
    v_lshlrev_b32 v9, 3, v9
    s_cmp_eq_u32 s{sWAVE}, 7
    s_cbranch_scc1 L_fin""")
    g(f"""
    v_lshrrev_b32 v7, 5, v0
    v_mul_u32_u24 v7, 896, v7
    v_and_b32 v10, 31, v0
    v_lshl_add_u32 v7, v10, 2, v7
    s_lshl_b32 s43, s{sWAVE}, 7
    v_add_u32 v10, s43, v7
    global_load_dword v14, v10, s[{sX}:{sX+1}]
    v_lshlrev_b32 v11, 1, v10
    s_lshl_b32 s43, s{sU}, 7
    s_and_b32 s41, s{sWAVE}, 3
    s_lshl_b32 s41, s41, 5
    s_add_u32 s43, s43, s41
    v_lshlrev_b32 v12, 3, v5
    v_add_u32 v12, s43, v12
    global_load_dwordx2 v[60:61], v12, s[{sB1}:{sB1+1}]
    v_lshl_add_u32 v12, v8, 7, v9
    v_add_u32 v12, s41, v12
    v_mul_u32_u24 v13, 896, v8
    v_add_u32 v13, v13, v9
    s_lshl_b32 s43, s{sWAVE}, 7
    s_add_u32 s43, s43, {W2L}
    v_add_u32 v13, s43, v13""")
    g.base(60, sWS, WS_A1)
    g.base(62, sWS, WS_A1 + 4 * 3584)
    g("s_waitcnt lgkmcnt(0)\ns_barrier")
    g.ts(8)
    for ks in range(2):
        for t in range(4):
            a = vW2 + 16*ks + 4*t
            g(f"ds_read_b64_tr_b16 v[{a}:{a+1}], v13 offset:{ks*32*896 + t*32}")
            g(f"ds_read_b64_tr_b16 v[{a+2}:{a+3}], v13 offset:{ks*32*896 + t*32 + 4*896}")
    for j in range(14):
        a = vW1 + 4*j
        g(f"ds_read_b64_tr_b16 v[{a}:{a+1}], v12 offset:{j*4096}")
        g(f"ds_read_b64_tr_b16 v[{a+2}:{a+3}], v12 offset:{j*4096 + 512}")
    g(f"v_add_u32 v15, 7168, v11")
    top, done = g.lab("apoll"), g.lab("adone")
    g(f"{top}:")
    for k in range(8):
        b = 60 + 2 * (k // 4)
        va = 11 if (k & 2) == 0 else 15
        g(f"global_load_dwordx2 v[{16+2*k}:{17+2*k}], v{va}, s[{b}:{b+1}] offset:{(k&1)*3584} sc1")
    g("s_waitcnt vmcnt(0)")
    g.maxu_chain(32, range(16, 32))
    g(f"v_cmp_eq_u32 vcc, -1, v32")
    g.poll_tail(top, done, opt.get("sl2", 1))
    g.ts(9)
    for st in (8, 4, 2):
        for i in range(st):
            g(f"v_add_f32 v{16+i}, v{16+i}, v{16+st+i}")
    g(f"""
    v_cvt_pk_bf16_f32 v16, v16, v17
    v_lshlrev_b32 v18, 16, v14
    v_and_b32 v19, 0xffff0000, v14
    v_lshlrev_b32 v20, 16, v16
    v_and_b32 v21, 0xffff0000, v16
    v_add_f32 v18, v18, v20
    v_add_f32 v19, v19, v21
    v_cvt_pk_bf16_f32 v14, v18, v19
    v_add_u32 v10, {HB}, v10
    v_add_u32 v7, {HB}, v7
    ds_write_b32 v10, v14
    s_waitcnt lgkmcnt(0)
    s_barrier""")
    for j in range(7):
        g(f"ds_read_b32 v{16+j}, v7 offset:{128*j}")
    g(f"""
    v_lshlrev_b32 v56, 16, v14
    v_and_b32 v57, 0xffff0000, v14
    s_waitcnt lgkmcnt(0)""")
    g.ln_stats(16, 24, 40, 41, 42)
    g.ln_apply(56, 57, 40, 41, 14)
    g(f"""
    ds_write_b32 v10, v14 offset:{(XN - HB) & 0xffff}""" if XN > HB else f"""
    v_subrev_u32 v10, {HB - XN}, v10
    ds_write_b32 v10, v14""")
    g(f"""
    v_mul_u32_u24 v12, 896, v6
    v_lshl_add_u32 v12, v5, 4, v12
    v_add_u32 v12, {XN}, v12
    s_waitcnt lgkmcnt(0)
    s_barrier""")
    g.ts(10)
    g(f"""
    s_cmp_lt_u32 s{sWAVE}, 4
    s_cbranch_scc0 L_no_ffn1""")
    for j in range(14):
        g(f"ds_read_b128 v[{vH+4*j}:{vH+4*j+3}], v12 offset:{64*j}")
    g(f"""
    v_lshlrev_b32 v20, 16, v60
    v_and_b32 v21, 0xffff0000, v60
    v_lshlrev_b32 v22, 16, v61
    v_and_b32 v23, 0xffff0000, v61
    v_lshlrev_b32 v12, 7, v6
    v_lshl_add_u32 v12, v5, 3, v12
    s_lshl_b32 s43, s{sWAVE}, 5
    s_add_u32 s43, s43, {FB}
    v_add_u32 v12, s43, v12""")
    for j in range(14):
        c = "0" if j == 0 else "v[16:19]"
        g(f"s_waitcnt lgkmcnt({13-j})")
        g(f"v_mfma_f32_16x16x32_bf16 v[16:19], v[{vW1+4*j}:{vW1+4*j+3}], v[{vH+4*j}:{vH+4*j+3}], {c}")
    g(f"""
    s_nop 7
    v_cvt_pk_bf16_f32 v24, v16, v17
    v_cvt_pk_bf16_f32 v25, v18, v19
    v_lshlrev_b32 v16, 16, v24
    v_and_b32 v17, 0xffff0000, v24
    v_lshlrev_b32 v18, 16, v25
    v_and_b32 v19, 0xffff0000, v25
    v_add_f32 v16, v16, v20
    v_add_f32 v17, v17, v21
    v_add_f32 v18, v18, v22
    v_add_f32 v19, v19, v23
    v_cvt_pk_bf16_f32 v24, v16, v17
    v_cvt_pk_bf16_f32 v25, v18, v19
    v_lshlrev_b32 v16, 16, v24
    v_and_b32 v17, 0xffff0000, v24
    v_lshlrev_b32 v18, 16, v25
    v_and_b32 v19, 0xffff0000, v25
    v_max_f32 v16, 0, v16
    v_max_f32 v17, 0, v17
    v_max_f32 v18, 0, v18
    v_max_f32 v19, 0, v19
    v_mul_f32 v16, v16, v16
    v_mul_f32 v17, v17, v17
    v_mul_f32 v18, v18, v18
    v_mul_f32 v19, v19, v19
    v_cvt_pk_bf16_f32 v24, v16, v17
    v_cvt_pk_bf16_f32 v25, v18, v19
    ds_write_b64 v12, v[24:25]
    L_no_ffn1:
    v_lshlrev_b32 v12, 7, v6
    v_lshl_add_u32 v12, v5, 4, v12
    v_add_u32 v12, {FB}, v12""")
    g.mask(54, 0x0c0c); g.mask(56, 0x3030); g.mask(58, 0xc0c0)
    g(f"""
    s_mul_i32 s43, s{sU}, 3584
    s_lshl_b32 s41, s{sWAVE}, 8
    s_add_u32 s43, s43, s41""")
    g.base(60, sWS, WS_Y2, 43)
    g(f"""
    v_mul_u32_u24 v15, 1792, v6
    v_bfe_u32 v13, v0, 1, 2
    v_lshl_add_u32 v15, v13, 6, v15
    v_lshl_add_u32 v15, v5, 4, v15
    s_waitcnt lgkmcnt(0)
    s_barrier
    ds_read_b128 v[16:19], v12
    ds_read_b128 v[20:23], v12 offset:64
    s_waitcnt lgkmcnt(1)""")
    for t in range(4):
        g(f"v_mfma_f32_16x16x32_bf16 v[{32+4*t}:{35+4*t}], v[{vW2+4*t}:{vW2+4*t+3}], v[16:19], 0")
    g("s_waitcnt lgkmcnt(0)")
    for t in range(4):
        g(f"v_mfma_f32_16x16x32_bf16 v[{32+4*t}:{35+4*t}], v[{vW2+16+4*t}:{vW2+16+4*t+3}], v[20:23], v[{32+4*t}:{35+4*t}]")
    g("s_nop 5")
    g.select4(16, 32, 54)
    g(f"""
    s_mov_b32 exec_lo, 0x00ff00ff
    s_mov_b32 exec_hi, 0x00ff00ff
    global_store_dwordx4 v15, v[16:19], s[60:61] sc1
    s_mov_b64 exec, -1""")
    g.ts(11)
    g.endwave()

    g(f"""
    L_fin:
    s_cmp_ge_u32 s{sU}, 14
    s_cselect_b32 s41, 14, 0
    s_sub_u32 s41, s{sU}, s41
    s_lshl_b32 s41, s41, 6
    v_and_b32 v10, 7, v0
    v_lshlrev_b32 v10, 3, v10
    v_add_u32 v11, s41, v10
    global_load_dwordx2 v[40:41], v11, s[{sB2}:{sB2+1}]
    s_lshl_b32 s43, s{sU}, 6
    v_add_u32 v12, s43, v10
    v_add_u32 v13, {HB}, v12
    v_lshrrev_b32 v14, 3, v0
    v_mul_u32_u24 v14, 3584, v14
    v_lshl_add_u32 v14, v12, 1, v14""")
    for i in range(4):
        g.base(54 + 2*i, sWS, WS_Y2 + i * 8 * 3584)
    g(f"""
    v_mov_b32 v28, 0
    v_mov_b32 v29, 0
    v_mov_b32 v30, 0
    v_mov_b32 v31, 0
    s_barrier
    s_barrier
    ds_read_b64 v[42:43], v13
    s_barrier
    s_barrier""")
    g.ts(11)
    top, done, skip = g.lab("ypoll"), g.lab("ydone"), g.lab("yskip")
    g(f"""
    {top}:
    global_load_dwordx4 v[16:19], v14, s[54:55] sc1
    global_load_dwordx4 v[20:23], v14, s[56:57] sc1
    global_load_dwordx4 v[24:27], v14, s[58:59] sc1
    s_mov_b64 s[62:63], exec
    s_mov_b32 exec_hi, 0
    s_cbranch_execz {skip}
    global_load_dwordx4 v[28:31], v14, s[60:61] sc1
    {skip}:
    s_mov_b64 exec, s[62:63]
    s_waitcnt vmcnt(0)""")
    g.maxu_chain(32, range(16, 32))
    g(f"v_cmp_eq_u32 vcc, -1, v32")
    g.poll_tail(top, done, opt.get("sl3", 1))
    g.ts(12)
    for i in range(8):
        g(f"v_add_f32 v{16+i}, v{16+i}, v{24+i}")
    for i in range(4):
        g(f"v_add_f32 v{16+i}, v{16+i}, v{20+i}")
    g("s_nop 0")
    for i in range(4):
        g(f"v_add_f32_dpp v{16+i}, v{16+i}, v{16+i} row_ror:8 row_mask:0xf bank_mask:0xf")
    for sw in ("16", "32"):
        for i in range(4):
            g(f"v_mov_b32 v{20+i}, v{16+i}")
        for i in range(4):
            g(("s_nop 0\n" if i == 3 else "") + f"v_permlane{sw}_swap_b32 v{16+i}, v{20+i}")
        for i in range(4):
            g(("s_nop 0\n" if i == 3 else "") + f"v_add_f32 v{16+i}, v{16+i}, v{20+i}")
    g(f"""
    s_waitcnt lgkmcnt(0)
    v_cvt_pk_bf16_f32 v24, v16, v17
    v_cvt_pk_bf16_f32 v25, v18, v19""")
    for src in (40, 42):
        g(f"""
        v_lshlrev_b32 v16, 16, v24
        v_and_b32 v17, 0xffff0000, v24
        v_lshlrev_b32 v18, 16, v25
        v_and_b32 v19, 0xffff0000, v25
        v_lshlrev_b32 v20, 16, v{src}
        v_and_b32 v21, 0xffff0000, v{src}
        v_lshlrev_b32 v22, 16, v{src+1}
        v_and_b32 v23, 0xffff0000, v{src+1}
        v_add_f32 v16, v16, v20
        v_add_f32 v17, v17, v21
        v_add_f32 v18, v18, v22
        v_add_f32 v19, v19, v23
        v_cvt_pk_bf16_f32 v24, v16, v17
        v_cvt_pk_bf16_f32 v25, v18, v19""")
    g(f"""
    s_mov_b64 exec, 0xff
    global_store_dwordx2 v12, v[24:25], s[{sOUT}:{sOUT+1}]
    s_cmp_eq_u32 s{sU}, 0
    s_cbranch_scc0 L_fin_end
    s_mov_b64 exec, 1
    s_add_u32 s43, s{sEPOCH}, 1
    v_mov_b32 v16, s43
    v_mov_b32 v17, {WS_EPOCH}
    global_store_dword v17, v16, s[{sWS}:{sWS+1}]
    L_fin_end:
    s_mov_b64 exec, -1""")
    g.ts(13)
    g.endwave()

    if opt.get("ts"):
        g(f"""
        L_dump:
        s_waitcnt vmcnt(0) lgkmcnt(0)""")
        g.ts(14)
        g(f"""
        s_getreg_b32 s{sTS+30}, hwreg(HW_REG_XCC_ID)
        s_lshl_b32 s43, s2, 3
        s_add_u32 s43, s43, s{sWAVE}
        s_lshl_b32 s43, s43, 6""")
        g.base(60, sWS, WS_TS, 43)
        g("s_mov_b64 exec, 1\nv_mov_b32 v1, 0")
        for k in range(16):
            g(f"v_mov_b32 v16, s{sTS+2*k}\nglobal_store_dword v1, v16, s[60:61] offset:{4*k}")
    g("L_exit:\ns_endpgm\nL_code_end:")

    ref = open(f"cdna_kernels/{NAME}.s.ref").read().split("\n")
    head = []
    for line in ref:
        if line.startswith("; @launch"):
            head.append(f"; @launch grid=(256,1,1) block=(512,1,1) lds={LDS_SIZE}")
            break
        head.append(line)
    out = "\n".join(head) + f"""
.amdgcn_target "amdgcn-amd-amdhsa--gfx950"
.text
.globl {KN}
.p2align 8
.type {KN},@function
{KN}:
""" + "\n".join(g.L) + f"""
.section .rodata,"a"
.p2align 6
.amdhsa_kernel {KN}
  .amdhsa_next_free_vgpr 208
  .amdhsa_next_free_sgpr 102
  .amdhsa_accum_offset 208
  .amdhsa_group_segment_fixed_size 0
  .amdhsa_kernarg_size 104
  .amdhsa_user_sgpr_count 2
  .amdhsa_user_sgpr_kernarg_segment_ptr 1
  .amdhsa_system_sgpr_workgroup_id_x 1
.end_amdhsa_kernel
"""
    return out


if __name__ == "__main__":
    out = sys.argv[1]
    opt = {}
    for a in sys.argv[2:]:
        k, v = a.split("=", 1)
        if k == "W":
            v = [int(c, 16) for c in v]
            v = (v * 8)[:8]
        elif v.lstrip("-").isdigit():
            v = int(v)
        opt[k] = v
    open(out, "w").write(gen(opt))
```

```python
import struct
import sys

NAME = "sequential_preLN__gqa_block_cached__dense_activation_squared_relu__decode"
KN = NAME + "_kernel"


def f32(x):
    return "0x%08x" % struct.unpack("<I", struct.pack("<f", x))[0]


PAIR = 1056
TILE = 8 * PAIR
SLOT = 4 * TILE
NSLOT = 4
RING_END = NSLOT * SLOT
PBUF = RING_END
WQS = RING_END
XN = WQS + 14336
QL = XN + 1792
HB = QL + 1024
FB = HB + 1792
RED = FB + 256
FLAGS = RED + 1024
LANDED = FLAGS
CONSUMED = FLAGS + 16
STAGE = FLAGS + 32
STATM = FLAGS + 64
STATL = FLAGS + 96
LDS_SIZE = FLAGS + 256
W2L = 57344

WS_EPOCH = 0
WS_QG = 0x1000
WS_ML = 0x10000
WS_OP = 0x20000
WS_A1 = 0x60000
WS_Y2 = 0x70000
WS_TS = 0x100000

TAGC = 0x9E3779B9
SPIN = 1 << 20

sX, sK, sV, sWQ, sWO, sW1, sB1 = 4, 6, 8, 10, 12, 16, 18
sW2, sB2, sOUT, sDBG, sWS = 20, 22, 24, 26, 28
sWAVE = 3
sKVH, sJ, sB, sSPLIT, sGRP, sREG, sU = 30, 31, 36, 37, 38, 39, 50
sSRD = 32
sEPOCH, sTAG, sTO = 51, 52, 53
sSGRP, sSSPL = 14, 15
sTS = 64


class Gen:
    def __init__(self, opt):
        self.L = []
        self.opt = opt
        self.uid = 0

    def __call__(self, s):
        for line in s.split("\n"):
            line = line.strip()
            if line:
                self.L.append(line if line.endswith(":") else "    " + line)

    def lab(self, base):
        self.uid += 1
        return f"L_{base}_{self.uid}"

    def ts(self, k):
        if self.opt.get("ts"):
            self(f"s_waitcnt lgkmcnt(0)\ns_memrealtime s[{sTS+2*k}:{sTS+2*k+1}]\ns_waitcnt lgkmcnt(0)")

    def ts_init(self):
        if self.opt.get("ts"):
            for k in range(16):
                self(f"s_mov_b64 s[{sTS+2*k}:{sTS+2*k+1}], 0")

    def endwave(self):
        if self.opt.get("ts"):
            self("s_branch L_dump")
        else:
            self("s_endpgm")

    def srd(self, ptr, size, off=None):
        if off is None:
            self(f"s_mov_b32 s{sSRD}, s{ptr}\ns_and_b32 s{sSRD+1}, s{ptr+1}, 0xffff")
        else:
            self(f"s_add_u32 s{sSRD}, s{ptr}, s{off}\ns_addc_u32 s{sSRD+1}, s{ptr+1}, 0\ns_and_b32 s{sSRD+1}, s{sSRD+1}, 0xffff")
        self(f"s_mov_b32 s{sSRD+2}, {size}\ns_mov_b32 s{sSRD+3}, 0x20000")

    def base(self, dst, ptr, const=0, off=None):
        self(f"s_add_u32 s{dst}, s{ptr}, {const}\ns_addc_u32 s{dst+1}, s{ptr+1}, 0")
        if off is not None:
            self(f"s_add_u32 s{dst}, s{dst}, s{off}\ns_addc_u32 s{dst+1}, s{dst+1}, 0")

    def mask(self, dst, pat16):
        v = pat16 | (pat16 << 16)
        self(f"s_mov_b32 s{dst}, 0x{v:08x}\ns_mov_b32 s{dst+1}, 0x{v:08x}")

    def lds_wait4(self, vzero, off, target, sseen, vt, sleep=1):
        top, done = self.lab("w4"), self.lab("w4d")
        self(f"""
        s_cmp_ge_u32 s{sseen}, {target}
        s_cbranch_scc1 {done}
        {top}:
        ds_read_b128 v[{vt}:{vt+3}], v{vzero} offset:{off - FLAGS}
        s_waitcnt lgkmcnt(0)
        v_min3_u32 v{vt}, v{vt}, v{vt+1}, v{vt+2}
        v_min_u32 v{vt}, v{vt}, v{vt+3}
        s_nop 0
        v_readfirstlane_b32 s{sseen}, v{vt}
        s_cmp_ge_u32 s{sseen}, {target}
        s_cbranch_scc1 {done}
        s_sleep {sleep}
        s_sub_u32 s{sTO}, s{sTO}, 1
        s_cbranch_scc0 {top}
        s_mov_b32 s{sTO}, 0
        {done}:""")

    def lds_wait1(self, vaddr, off, target, sseen, vt, sleep=1):
        top, done = self.lab("w1"), self.lab("w1d")
        self(f"""
        s_cmp_ge_u32 s{sseen}, {target}
        s_cbranch_scc1 {done}
        {top}:
        ds_read_b32 v{vt}, v{vaddr} offset:{off - FLAGS}
        s_waitcnt lgkmcnt(0)
        v_readfirstlane_b32 s{sseen}, v{vt}
        s_cmp_ge_u32 s{sseen}, {target}
        s_cbranch_scc1 {done}
        s_sleep {sleep}
        s_sub_u32 s{sTO}, s{sTO}, 1
        s_cbranch_scc0 {top}
        s_mov_b32 s{sTO}, 0
        {done}:""")

    def poll_tail(self, top, done, sleep):
        self(f"""
        s_cmp_eq_u64 vcc, 0
        s_cbranch_scc1 {done}
        s_mov_b64 exec, vcc
        s_sleep {sleep}
        s_sub_u32 s{sTO}, s{sTO}, 1
        s_cbranch_scc0 {top}
        s_mov_b32 s{sTO}, 0
        {done}:
        s_mov_b64 exec, -1""")

    def maxu_chain(self, dst, regs):
        regs = list(regs)
        first = True
        while regs:
            if first:
                a = regs[:3]; regs = regs[3:]
                if len(a) == 3:
                    self(f"v_max3_u32 v{dst}, v{a[0]}, v{a[1]}, v{a[2]}")
                else:
                    self(f"v_max_u32 v{dst}, v{a[0]}, v{a[1]}")
                first = False
            else:
                a = regs[:2]; regs = regs[2:]
                if len(a) == 2:
                    self(f"v_max3_u32 v{dst}, v{dst}, v{a[0]}, v{a[1]}")
                else:
                    self(f"v_max_u32 v{dst}, v{dst}, v{a[0]}")

    def xlane(self, op, v, vt, rors, s16, s32):
        for r in rors:
            self(f"s_nop 1\n{op}_dpp v{v}, v{v}, v{v} row_ror:{r} row_mask:0xf bank_mask:0xf")
        if s16:
            self(f"v_mov_b32 v{vt}, v{v}\ns_nop 1\nv_permlane16_swap_b32 v{v}, v{vt}\ns_nop 1\n{op} v{v}, v{v}, v{vt}")
        if s32:
            self(f"v_mov_b32 v{vt}, v{v}\ns_nop 1\nv_permlane32_swap_b32 v{v}, v{vt}\ns_nop 1\n{op} v{v}, v{v}, v{vt}")

    def rbf(self, v):
        self(f"v_cvt_pk_bf16_f32 v{v}, v{v}, v{v}\nv_and_b32 v{v}, 0xffff0000, v{v}")

    def ln_stats(self, vp, vx, vmu, vrs, vt):
        for j in range(7):
            self(f"v_lshlrev_b32 v{vx+2*j}, 16, v{vp+j}\nv_and_b32 v{vx+2*j+1}, 0xffff0000, v{vp+j}")
        self(f"v_add_f32 v{vmu}, v{vx}, v{vx+1}\nv_add_f32 v{vt}, v{vx+2}, v{vx+3}")
        for j in range(4, 14, 2):
            self(f"v_add_f32 v{vmu}, v{vmu}, v{vx+j}\nv_add_f32 v{vt}, v{vt}, v{vx+j+1}")
        self(f"v_add_f32 v{vmu}, v{vmu}, v{vt}")
        self.xlane("v_add_f32", vmu, vt, [1, 2, 4, 8], True, False)
        self(f"v_mul_f32 v{vmu}, {f32(1.0/448)}, v{vmu}")
        self(f"v_sub_f32 v{vt}, v{vx}, v{vmu}\nv_mul_f32 v{vrs}, v{vt}, v{vt}")
        for j in range(1, 14):
            self(f"v_sub_f32 v{vt}, v{vx+j}, v{vmu}\nv_fmac_f32 v{vrs}, v{vt}, v{vt}")
        self.xlane("v_add_f32", vrs, vt, [1, 2, 4, 8], True, False)
        self(f"v_mul_f32 v{vrs}, {f32(1.0/448)}, v{vrs}")
        self.rbf(vrs)
        self(f"v_add_f32 v{vrs}, {f32(1e-5)}, v{vrs}")
        self.rbf(vrs)
        self(f"v_sqrt_f32 v{vrs}, v{vrs}")
        self.rbf(vmu)
        self.rbf(vrs)
        self(f"v_rcp_f32 v{vrs}, v{vrs}\ns_nop 0")

    def ln_apply(self, va, vb, vmu, vrs, vout):
        self(f"""
        v_sub_f32 v{va}, v{va}, v{vmu}
        v_sub_f32 v{vb}, v{vb}, v{vmu}
        v_cvt_pk_bf16_f32 v{vout}, v{va}, v{vb}
        v_lshlrev_b32 v{va}, 16, v{vout}
        v_and_b32 v{vb}, 0xffff0000, v{vout}
        v_mul_f32 v{va}, v{va}, v{vrs}
        v_mul_f32 v{vb}, v{vb}, v{vrs}
        v_cvt_pk_bf16_f32 v{vout}, v{va}, v{vb}""")

    def select4(self, dst, acc, m):
        for r in range(4):
            self(f"v_cndmask_b32 v{dst+r}, v{acc+r}, v{acc+4+r}, s[{m}:{m+1}]")
        for r in range(4):
            self(f"v_cndmask_b32 v{dst+r}, v{dst+r}, v{acc+8+r}, s[{m+2}:{m+3}]")
        for r in range(4):
            self(f"v_cndmask_b32 v{dst+r}, v{dst+r}, v{acc+12+r}, s[{m+4}:{m+5}]")

    def prefetch_code(self, vt):
        pc = self.lab("pc")
        self(f"""
        s_getpc_b64 s[62:63]
        {pc}:
        s_sub_u32 s62, s62, {pc}-{KN}
        s_subb_u32 s63, s63, 0
        v_lshlrev_b32 v{vt}, 7, v0
        v_min_u32 v{vt+1}, L_code_end-{KN}-4, v{vt}
        global_load_dword v254, v{vt+1}, s[62:63] {self.opt.get('ppol', '')}
        v_add_u32 v{vt}, 8192, v{vt}
        v_min_u32 v{vt+1}, L_code_end-{KN}-4, v{vt}
        global_load_dword v255, v{vt+1}, s[62:63] {self.opt.get('ppol', '')}""")


def gen(opt):
    g = Gen(opt)
    W = opt.get("W", [4] * 8)
    wpol = opt.get("wpol", "nt")
    qpol = opt.get("qpol", "nt")
    xpol = opt.get("xpol", "nt")
    ppol = opt.get("ppol", "")
    vF = 2

    mp = opt.get("map", 1)
    if mp == 0:
        regcalc = f"s_lshl_b32 s{sREG}, s{sGRP}, 4\ns_add_u32 s{sREG}, s{sREG}, s{sSPLIT}"
    else:
        regcalc = f"s_mov_b32 s{sREG}, s2"
    g(f"""
    s_cmp_ge_u32 s2, 256
    s_cbranch_scc1 L_exit
    s_load_dwordx16 s[4:19], s[0:1], 0
    s_load_dwordx8 s[20:27], s[0:1], 64
    s_load_dwordx2 s[28:29], s[0:1], 96""")
    if opt.get("pf0", 1):
        pc = g.lab("pc")
        g(f"""
        s_getpc_b64 s[62:63]
        {pc}:
        s_sub_u32 s62, s62, {pc}-{KN}
        s_subb_u32 s63, s63, 0
        v_lshlrev_b32 v1, 5, v0
        v_min_u32 v1, L_code_end-{KN}-4, v1
        global_load_dword v255, v1, s[62:63] {ppol}""")
    g.ts_init()
    if opt.get("ts"):
        g(f"s_memrealtime s[{sTS}:{sTS+1}]")
    g(f"""
    v_lshrrev_b32 v1, 6, v0
    v_and_b32 v0, 63, v0
    v_readfirstlane_b32 s{sWAVE}, v1
    v_mov_b32 v{vF}, {FLAGS}
    v_lshl_add_u32 v3, v0, 2, v{vF}
    v_mov_b32 v4, 0
    ds_write_b32 v3, v4
    s_and_b32 s{sKVH}, s2, 7
    s_lshr_b32 s{sJ}, s2, 3
    s_lshr_b32 s{sB}, s{sJ}, 4
    s_and_b32 s{sSPLIT}, s{sJ}, 15
    s_lshl_b32 s{sGRP}, s{sB}, 3
    s_add_u32 s{sGRP}, s{sGRP}, s{sKVH}
    {regcalc}
    s_lshl_b32 s{sU}, s{sGRP}, 1
    s_add_u32 s{sU}, s{sU}, s{sSPLIT}
    s_sub_u32 s{sU}, s{sU}, 14
    s_mov_b32 s{sTO}, {SPIN}
    v_lshlrev_b32 v1, 4, v0
    s_lshl_b32 s44, s{sREG}, 20
    s_waitcnt lgkmcnt(0)
    s_barrier
    s_lshr_b32 s{sSGRP}, s{sREG}, 4
    s_and_b32 s{sSSPL}, s{sREG}, 15
    s_cmp_ge_u32 s{sWAVE}, 4
    s_cbranch_scc1 L_consumer""")

    g("s_setprio 3")
    g.ts(3)
    g.srd(sK, 1 << 20, 44)
    g(f"""
    s_mov_b32 s40, 0
    s_lshl_b32 s41, s{sWAVE}, 13
    s_mul_i32 s47, s{sWAVE}, {TILE}
    s_mov_b32 s46, 0
    s_mov_b32 s45, 0
    s_lshl_b32 s43, s{sWAVE}, 2
    v_add_u32 v3, s43, v{vF}
    L_row:
    s_add_u32 s42, s46, s47""")
    published = False
    for j in range(8):
        g(f"""
        s_add_u32 m0, s42, {j*PAIR}
        s_add_u32 s43, s41, {j*1024}
        buffer_load_dwordx4 v1, s[{sSRD}:{sSRD+3}], s43 offen nt lds""")
        if j == 7:
            g(f"ds_read_b128 v[8:11], v{vF} offset:{CONSUMED-FLAGS}")
        g(f"s_waitcnt vmcnt({W[j]})")
        if not published and j + 1 >= W[j]:
            g(f"v_mov_b32 v4, s40\nds_write_b32 v3, v4 offset:{LANDED-FLAGS}")
            published = True
    assert published
    g(f"""
    s_add_u32 s40, s40, 1
    s_add_u32 s41, s41, 32768
    s_add_u32 s46, s46, {SLOT}
    s_cmp_eq_u32 s46, {RING_END}
    s_cselect_b32 s46, 0, s46
    s_waitcnt lgkmcnt(0)
    v_min3_u32 v8, v8, v9, v10
    v_min_u32 v8, v8, v11
    s_sub_u32 s48, s40, {NSLOT-1}
    v_readfirstlane_b32 s45, v8
    s_max_i32 s48, s48, 0""")
    g.lds_wait4(vF, CONSUMED, "s48", 45, 8)
    if opt.get("ts"):
        for rr, kk in ((1, 4), (8, 5)):
            lb = g.lab("tsk")
            g(f"s_cmp_eq_u32 s40, {rr}\ns_cbranch_scc0 {lb}")
            g.ts(kk)
            g(f"{lb}:")
    g(f"""
    s_cmp_eq_u32 s40, 32
    s_cbranch_scc0 L_row_nosw""")
    g.ts(1)
    g.srd(sV, 1 << 20, 44)
    g(f"""
    s_lshl_b32 s41, s{sWAVE}, 13
    L_row_nosw:
    s_cmp_lt_u32 s40, 64
    s_cbranch_scc1 L_row""")
    g(f"""
    v_mov_b32 v4, 64
    s_cmp_lt_u32 s{sSPLIT}, 14
    s_cbranch_scc0 L_ld_not_t1""")
    g.srd(sWO, 4096 * 896)
    g(f"""
    v_lshrrev_b32 v5, 2, v0
    v_mul_u32_u24 v5, 896, v5
    v_and_b32 v6, 3, v0
    v_lshl_add_u32 v5, v6, 4, v5
    s_lshl_b32 s41, s{sKVH}, 2
    s_add_u32 s41, s41, s{sWAVE}
    s_mul_i32 s41, s41, {128*896}
    s_lshl_b32 s43, s{sSPLIT}, 6
    s_add_u32 s41, s41, s43
    s_lshl_b32 s42, s{sWAVE}, 13""")
    for j in range(8):
        g(f"""
        s_add_u32 m0, s42, {j*1024}
        s_add_u32 s43, s41, {j*16*896}
        buffer_load_dwordx4 v5, s[{sSRD}:{sSRD+3}], s43 offen {wpol} lds""")
    g(f"""
    s_waitcnt vmcnt(8)
    ds_write_b32 v3, v4 offset:{LANDED-FLAGS}""")
    g.ts(2)
    g(f"""
    s_waitcnt vmcnt(0)
    s_branch L_t1
    L_ld_not_t1:
    s_cmp_lt_u32 s{sU}, 28
    s_cbranch_scc1 L_ld_t2
    s_waitcnt vmcnt(0)
    ds_write_b32 v3, v4 offset:{LANDED-FLAGS}""")
    g.ts(2)
    g.endwave()
    g("L_ld_t2:")
    g.srd(sW1, 448 * 3584)
    g(f"""
    v_lshrrev_b32 v5, 3, v0
    v_mul_u32_u24 v5, 3584, v5
    v_and_b32 v6, 7, v0
    v_lshl_add_u32 v5, v6, 4, v5
    s_mul_i32 s41, s{sWAVE}, {7*8*3584}
    s_lshl_b32 s43, s{sU}, 7
    s_add_u32 s41, s41, s43
    s_mul_i32 s42, s{sWAVE}, {7*1024}""")
    for row in range(2):
        if row:
            g.lds_wait4(vF, CONSUMED, 62, 45, 8)
        for j in range(7):
            idx = row * 28 + j
            g(f"""
            s_add_u32 m0, s42, {idx*1024}
            s_add_u32 s43, s41, {idx*8*3584}
            buffer_load_dwordx4 v5, s[{sSRD}:{sSRD+3}], s43 offen {wpol} lds""")
        if row == 0:
            g(f"s_waitcnt vmcnt(7)\nds_write_b32 v3, v4 offset:{LANDED-FLAGS}")
            g.ts(2)
    g.srd(sW2, 1792 * 896)
    g(f"""
    s_mul_i32 s41, s{sU}, {64*896}
    s_add_u32 s41, s41, s42""")
    for row in range(2):
        g.lds_wait4(vF, CONSUMED, 63 + row, 45, 8)
        for j in range(7):
            idx = row * 28 + j
            g(f"""
            s_add_u32 m0, s42, {W2L + idx*1024}
            s_add_u32 s43, s41, {idx*1024}
            buffer_load_dwordx4 v1, s[{sSRD}:{sSRD+3}], s43 offen {wpol} lds""")
    g("s_waitcnt vmcnt(0)\ns_branch L_t2")

    sC = 47
    sSEEN, sSTG = 45, 46
    g(f"""
    L_consumer:
    s_load_dword s{sEPOCH}, s[{sWS}:{sWS+1}], {WS_EPOCH}
    s_sub_u32 s{sC}, s{sWAVE}, 4
    s_lshl_b32 s43, s{sC}, 2
    v_add_u32 v3, s43, v{vF}
    v_lshrrev_b32 v5, 4, v0
    v_and_b32 v6, 1, v0
    s_mov_b32 s{sSEEN}, 0
    s_mov_b32 s{sSTG}, 0
    s_cmp_eq_u32 s{sC}, 0
    s_cbranch_scc1 L_qprod
    s_cmp_eq_u32 s{sC}, 1
    s_cbranch_scc0 L_drain""")
    g(f"""
    v_mov_b32 v12, -1
    v_mov_b32 v13, -1
    v_mov_b32 v14, -1
    v_mov_b32 v15, -1
    s_lshl_b32 s43, s{sREG}, 10""")
    g.base(54, sWS, WS_OP, 43)
    g(f"""
    global_store_dwordx4 v1, v[12:15], s[54:55] sc1
    s_cmp_lt_u32 s{sSPLIT}, 14
    s_cbranch_scc0 L_clr_not_t1
    s_lshl_b32 s43, s{sKVH}, 1
    s_add_u32 s43, s43, s{sB}
    s_mul_i32 s43, s43, 1792
    s_lshl_b32 s41, s{sSPLIT}, 7
    s_add_u32 s43, s43, s41""")
    g.base(58, sWS, WS_A1, 43)
    g(f"""
    s_mov_b64 exec, 0xff
    global_store_dwordx4 v1, v[12:15], s[58:59] sc1
    s_mov_b64 exec, -1
    s_branch L_drain
    L_clr_not_t1:
    s_mul_i32 s43, s{sU}, 3584""")
    g.base(58, sWS, WS_Y2, 43)
    g(f"""
    global_store_dwordx4 v1, v[12:15], s[58:59] sc1
    global_store_dwordx4 v1, v[12:15], s[58:59] offset:1024 sc1
    global_store_dwordx4 v1, v[12:15], s[58:59] offset:2048 sc1
    global_store_dwordx4 v1, v[12:15], s[58:59] offset:2560 sc1
    s_branch L_drain""")

    g(f"""
    L_qprod:
    s_setprio 2
    v_lshrrev_b32 v7, 5, v0
    v_mul_u32_u24 v7, 896, v7
    v_and_b32 v8, 31, v0
    v_lshl_add_u32 v7, v8, 2, v7""")
    for j in range(7):
        g(f"global_load_dword v{16+j}, v7, s[{sX}:{sX+1}] offset:{128*j} {xpol}")
    g.srd(sWQ, 448 * 8192)
    g(f"""
    v_lshrrev_b32 v9, 1, v0
    v_lshlrev_b32 v9, 13, v9
    v_lshl_add_u32 v9, v6, 4, v9
    s_lshl_b32 s41, s{sKVH}, 10
    s_lshl_b32 s43, s{sJ}, 5
    s_add_u32 s41, s41, s43""")
    for j in range(14):
        g(f"""
        s_mov_b32 m0, {WQS + j*1024}
        s_add_u32 s43, s41, {j*32*8192}
        buffer_load_dwordx4 v9, s[{sSRD}:{sSRD+3}], s43 offen {qpol} lds""")
    g("s_waitcnt vmcnt(14)")
    g.ts(1)
    g.ln_stats(16, 24, 10, 11, 12)
    g(f"v_add_u32 v7, {XN}, v7")
    for j in range(7):
        g.ln_apply(24 + 2*j, 25 + 2*j, 10, 11, 16 + j)
        g(f"ds_write_b32 v7, v{16+j} offset:{128*j}")
    g(f"""
    v_mul_u32_u24 v8, 896, v6
    v_lshl_add_u32 v8, v5, 4, v8
    v_add_u32 v8, {XN}, v8
    v_bfe_u32 v9, v0, 2, 2
    v_lshl_add_u32 v9, v5, 3, v9
    v_lshlrev_b32 v9, 5, v9
    v_and_b32 v10, 3, v0
    v_lshl_add_u32 v9, v10, 3, v9
    v_add_u32 v9, {WQS}, v9""")
    for j in range(14):
        g(f"ds_read_b128 v[{64+4*j}:{67+4*j}], v8 offset:{64*j}")
    g("s_waitcnt vmcnt(0)")
    g.ts(2)
    for j in range(14):
        g(f"ds_read_b64_tr_b16 v[{128+4*j}:{129+4*j}], v9 offset:{1024*j}")
        g(f"ds_read_b64_tr_b16 v[{130+4*j}:{131+4*j}], v9 offset:{1024*j+128}")
    g(f"""
    s_lshl_b32 s43, s{sKVH}, 11
    s_lshl_b32 s41, s{sJ}, 6
    s_add_u32 s43, s43, s41""")
    g.base(60, sWS, WS_QG, 43)
    g(f"""
    v_lshlrev_b32 v10, 14, v6
    v_lshl_add_u32 v10, v5, 4, v10
    s_waitcnt lgkmcnt(0)
    s_add_u32 s{sTAG}, s{sEPOCH}, 0x{TAGC:08x}""")
    for j in range(14):
        c = "0" if j == 0 else "v[12:15]"
        g(f"v_mfma_f32_16x16x32_bf16 v[12:15], v[{128+4*j}:{131+4*j}], v[{64+4*j}:{67+4*j}], {c}")
    g(f"""
    v_mov_b32 v17, s{sTAG}
    v_mov_b32 v19, s{sTAG}
    s_mov_b32 exec_lo, 0x00030003
    s_mov_b32 exec_hi, 0x00030003
    s_nop 4
    v_cvt_pk_bf16_f32 v16, v12, v13
    v_cvt_pk_bf16_f32 v18, v14, v15
    global_store_dwordx4 v10, v[16:19], s[60:61] sc1
    s_mov_b64 exec, -1""")
    g.ts(3)
    vQ, vA, vD, vS = 32, 64, 96, 100
    NPRE = opt.get("npre", 4)
    vPRE = [64, 116, 148, 180, 212][:NPRE]
    g(f"""
    L_drain:
    v_and_b32 v8, 7, v0
    v_mul_u32_u24 v8, {PAIR}, v8
    v_bfe_u32 v9, v0, 3, 1
    v_lshl_add_u32 v8, v9, 9, v8
    v_lshl_add_u32 v8, v5, 4, v8
    s_mul_i32 s43, s{sC}, {TILE}
    v_add_u32 v9, s43, v8""")
    for t in range(NPRE):
        g.lds_wait1(3, LANDED, t + 1, sSEEN, 10)
        g(f"v_add_u32 v8, {(t % NSLOT) * SLOT}, v9\nv_mov_b32 v4, {t+1}")
        for i in range(8):
            g(f"ds_read_b128 v[{vPRE[t]+4*i}:{vPRE[t]+4*i+3}], v8 offset:{64*i}")
        g(f"ds_write_b32 v3, v4 offset:{CONSUMED-FLAGS}")
    g(f"""
    s_cmp_eq_u32 s{sC}, 0
    s_cbranch_scc0 L_qwait
    s_lshl_b32 s43, s{sSGRP}, 11""")
    g.base(60, sWS, WS_QG, 43)
    top, done = g.lab("qpoll"), g.lab("qdone")
    g(f"""
    {top}:
    global_load_dwordx4 v[20:23], v1, s[60:61] sc1
    global_load_dwordx4 v[24:27], v1, s[60:61] offset:1024 sc1
    s_waitcnt vmcnt(0)
    v_xor_b32 v28, s{sTAG}, v21
    v_xor_b32 v29, s{sTAG}, v23
    v_xor_b32 v30, s{sTAG}, v25
    v_xor_b32 v31, s{sTAG}, v27
    v_or3_b32 v28, v28, v29, v30
    v_or_b32 v28, v28, v31
    v_cmp_ne_u32 vcc, 0, v28""")
    g.poll_tail(top, done, 2)
    g(f"""
    v_mov_b32 v21, v22
    v_mov_b32 v25, v26
    v_lshlrev_b32 v8, 3, v0
    v_add_u32 v8, {QL}, v8
    v_mov_b32 v4, 1
    ds_write_b64 v8, v[20:21]
    ds_write_b64 v8, v[24:25] offset:512
    ds_write_b32 v3, v4 offset:{STAGE-FLAGS}
    s_setprio 0""")
    g.ts(4)
    g("L_qwait:")
    g.lds_wait1(vF, STAGE, 1, sSTG, 8)
    g(f"""
    v_lshlrev_b32 v8, 9, v6
    v_lshl_add_u32 v8, v5, 4, v8
    v_add_u32 v8, {QL}, v8""")
    for i in range(8):
        g(f"ds_read_b128 v[{vQ+4*i}:{vQ+4*i+3}], v8 offset:{64*i}")
    g(f"""
    s_mov_b32 s40, {NPRE}
    s_mov_b32 s42, {(NPRE % NSLOT) * SLOT}
    s_waitcnt lgkmcnt(0)
    s_add_u32 s{sTAG}, s{sEPOCH}, 0x{TAGC:08x}""")
    g.mask(48, 0x0003)
    for t in range(NPRE):
        for i in range(8):
            c = "0" if i == 0 else f"v[{vD}:{vD+3}]"
            g(f"v_mfma_f32_16x16x32_bf16 v[{vD}:{vD+3}], v[{vPRE[t]+4*i}:{vPRE[t]+4*i+3}], v[{vQ+4*i}:{vQ+4*i+3}], {c}")
        g("s_nop 7")
        for r in range(4):
            g(f"v_cndmask_b32 v{vS+r}, v{vS+r}, v{vD+r}, s[48:49]")
        g("s_lshl_b64 s[48:49], s[48:49], 2")
    for G in range(4):
        top = g.lab("krow")
        if G:
            g.mask(48, 0x0003)
        g(f"""
        {top}:
        s_add_u32 s40, s40, 1""")
        g.lds_wait1(3, LANDED, "s40", sSEEN, 10)
        g(f"v_add_u32 v8, s42, v9\nv_mov_b32 v4, s40")
        for i in range(8):
            g(f"ds_read_b128 v[{vA+4*i}:{vA+4*i+3}], v8 offset:{64*i}")
        g(f"""
        ds_write_b32 v3, v4 offset:{CONSUMED-FLAGS}
        s_add_u32 s42, s42, {SLOT}
        s_cmp_eq_u32 s42, {RING_END}
        s_cselect_b32 s42, 0, s42""")
        for i in range(8):
            c = "0" if i == 0 else f"v[{vD}:{vD+3}]"
            g(f"s_waitcnt lgkmcnt({8-i})")
            g(f"v_mfma_f32_16x16x32_bf16 v[{vD}:{vD+3}], v[{vA+4*i}:{vA+4*i+3}], v[{vQ+4*i}:{vQ+4*i+3}], {c}")
        g("s_nop 7")
        for r in range(4):
            g(f"v_cndmask_b32 v{vS+4*G+r}, v{vS+4*G+r}, v{vD+r}, s[48:49]")
        g(f"""
        s_lshl_b64 s[48:49], s[48:49], 2
        s_and_b32 s43, s40, 7
        s_cbranch_scc1 {top}""")
    g.ts(5)
    for i in range(8):
        g(f"v_cvt_pk_bf16_f32 v{vA+i}, v{vS+2*i}, v{vS+2*i+1}")
    for i in range(8):
        g(f"v_lshlrev_b32 v{vS+2*i}, 16, v{vA+i}\nv_and_b32 v{vS+2*i+1}, 0xffff0000, v{vA+i}")
    vM, vL = 12, 13
    g(f"v_max3_f32 v{vM}, v{vS}, v{vS+1}, v{vS+2}")
    for i in range(3, 15, 2):
        g(f"v_max3_f32 v{vM}, v{vM}, v{vS+i}, v{vS+i+1}")
    g(f"v_max_f32 v{vM}, v{vM}, v{vS+15}")
    g.xlane("v_max_f32", vM, 10, [2, 4, 8], True, True)
    g(f"""
    v_lshl_add_u32 v14, v6, 4, v3
    v_lshl_add_u32 v15, v6, 4, v{vF}
    v_mov_b32 v4, 2
    ds_write_b32 v14, v{vM} offset:{STATM-FLAGS}
    ds_write_b32 v3, v4 offset:{STAGE-FLAGS}""")
    g.lds_wait4(vF, STAGE, 2, sSTG, 16)
    g(f"""
    ds_read_b128 v[16:19], v15 offset:{STATM-FLAGS}
    s_mov_b32 s43, {f32(1.4426950408889634/16)}
    s_waitcnt lgkmcnt(0)
    v_max3_f32 v{vM}, v16, v17, v18
    v_max_f32 v{vM}, v{vM}, v19""")
    for i in range(16):
        g(f"v_sub_f32 v{vS+i}, v{vS+i}, v{vM}")
    for i in range(16):
        g(f"v_mul_f32 v{vS+i}, s43, v{vS+i}")
    for i in range(16):
        g(f"v_exp_f32 v{vS+i}, v{vS+i}")
    g(f"v_add_f32 v{vL}, v{vS}, v{vS+1}\nv_add_f32 v10, v{vS+2}, v{vS+3}")
    for i in range(4, 16, 2):
        g(f"v_add_f32 v{vL}, v{vL}, v{vS+i}\nv_add_f32 v10, v10, v{vS+i+1}")
    g(f"v_add_f32 v{vL}, v{vL}, v10")
    g.xlane("v_add_f32", vL, 10, [2, 4, 8], True, True)
    for i in range(8):
        g(f"v_cvt_pk_bf16_f32 v{vA+i}, v{vS+2*i}, v{vS+2*i+1}")
    g(f"""
    v_bfe_u32 v8, v0, 1, 3
    v_lshlrev_b32 v8, 8, v8
    v_lshl_add_u32 v8, v6, 6, v8
    v_lshl_add_u32 v8, v5, 4, v8
    s_lshr_b32 s43, s{sC}, 1
    s_lshl_b32 s43, s43, 7
    s_and_b32 s41, s{sC}, 1
    s_lshl_b32 s41, s41, 3
    s_add_u32 s43, s43, s41
    s_add_u32 s43, s43, {PBUF}
    v_add_u32 v8, s43, v8
    v_mov_b32 v4, 3
    ds_write_b32 v14, v{vL} offset:{STATL-FLAGS}""")
    for G in range(4):
        g(f"ds_write_b64 v8, v[{vA+2*G}:{vA+2*G+1}] offset:{G*2048}")
    g(f"ds_write_b32 v3, v4 offset:{STAGE-FLAGS}")
    g.lds_wait4(vF, STAGE, 3, sSTG, 16)
    g(f"""
    ds_read_b128 v[16:19], v15 offset:{STATL-FLAGS}
    s_waitcnt lgkmcnt(0)
    v_add_f32 v16, v16, v17
    v_add_f32 v18, v18, v19
    v_add_f32 v{vL}, v16, v18
    s_cmp_eq_u32 s{sC}, 1
    s_cbranch_scc0 L_no_ml
    s_lshl_b32 s43, s{sREG}, 5""")
    g.base(56, sWS, WS_ML, 43)
    g(f"""
    v_mov_b32 v16, v{vM}
    v_mov_b32 v17, s{sTAG}
    v_mov_b32 v18, v{vL}
    v_mov_b32 v19, s{sTAG}
    s_mov_b64 exec, 3
    s_waitcnt vmcnt(0)
    global_store_dwordx4 v1, v[16:19], s[56:57] sc1
    s_mov_b64 exec, -1
    L_no_ml:""")
    g.ts(6)
    vP, vO = 32, 116
    g(f"""
    v_bfe_u32 v8, v0, 2, 3
    v_mul_u32_u24 v8, {PAIR}, v8
    v_lshrrev_b32 v9, 5, v0
    v_lshl_add_u32 v8, v9, 9, v8
    v_and_b32 v9, 3, v0
    v_lshl_add_u32 v8, v9, 3, v8
    s_lshl_b32 s43, s{sC}, 7
    v_add_u32 v9, s43, v8
    v_lshlrev_b32 v11, 6, v6
    v_lshl_add_u32 v11, v5, 4, v11
    v_add_u32 v11, {PBUF}, v11
    s_mov_b32 s{sSEEN}, 0""")
    for r in range(16):
        g(f"v_mov_b32 v{vO+r}, 0")

    def vloop(end):
        top = g.lab("vrow")
        g(f"""
        {top}:
        s_add_u32 s40, s40, 1""")
        g.lds_wait4(vF, LANDED, "s40", sSEEN, 16)
        g(f"v_add_u32 v8, s42, v9\nv_mov_b32 v4, s40")
        n = 0
        for pr in range(2):
            g(f"ds_read_b128 v[{vP+4*pr}:{vP+4*pr+3}], v11 offset:{128*pr}")
            for T in range(4):
                a = vA + 16*pr + 4*T
                g(f"ds_read_b64_tr_b16 v[{a}:{a+1}], v8 offset:{(2*pr)*TILE + 32*T}")
                g(f"ds_read_b64_tr_b16 v[{a+2}:{a+3}], v8 offset:{(2*pr+1)*TILE + 32*T}")
            if pr == 0:
                pass
        g(f"""
        ds_write_b32 v3, v4 offset:{CONSUMED-FLAGS}
        v_add_u32 v11, 256, v11
        s_add_u32 s42, s42, {SLOT}
        s_cmp_eq_u32 s42, {RING_END}
        s_cselect_b32 s42, 0, s42""")
        for pr in range(2):
            for T in range(4):
                a = vA + 16*pr + 4*T
                need = 9*pr + 1 + 2*(T+1)
                g(f"s_waitcnt lgkmcnt({min(19-need, 15)})")
                g(f"v_mfma_f32_16x16x32_bf16 v[{vO+4*T}:{vO+4*T+3}], v[{a}:{a+3}], v[{vP+4*pr}:{vP+4*pr+3}], v[{vO+4*T}:{vO+4*T+3}]")
        g(f"""
        s_cmp_lt_u32 s40, {end}
        s_cbranch_scc1 {top}""")

    vloop(48)
    vWt = 14
    g(f"s_lshl_b32 s43, s{sSGRP}, 9")
    g.base(56, sWS, WS_ML, 43)
    top, done = g.lab("mlpoll"), g.lab("mldone")
    g(f"""
    v_and_b32 v16, 15, v0
    v_lshlrev_b32 v16, 5, v16
    v_and_b32 v17, 1, v5
    v_lshl_add_u32 v16, v17, 4, v16
    {top}:
    global_load_dwordx4 v[18:21], v16, s[56:57] sc1
    s_waitcnt vmcnt(0)
    v_xor_b32 v19, s{sTAG}, v19
    v_xor_b32 v21, s{sTAG}, v21
    v_or_b32 v19, v19, v21
    v_cmp_ne_u32 vcc, 0, v19""")
    g.poll_tail(top, done, 4)
    g(f"v_mov_b32 v19, v20\nv_mov_b32 v20, v18")
    g.xlane("v_max_f32", 20, 21, [1, 2, 4, 8], False, False)
    g(f"""
    s_mov_b32 s43, {f32(1.4426950408889634/16)}
    v_sub_f32 v18, v18, v20
    v_mul_f32 v18, s43, v18
    v_exp_f32 v18, v18
    s_nop 0
    v_mul_f32 v19, v18, v19""")
    g.xlane("v_add_f32", 19, 21, [1, 2, 4, 8], False, False)
    g(f"""
    v_rcp_f32 v19, v19
    s_add_u32 s41, s{sSSPL}, 16
    v_mul_f32 v18, v18, v19
    s_nop 0
    v_readlane_b32 s48, v18, s{sSSPL}
    v_readlane_b32 s49, v18, s41
    v_cmp_eq_u32 vcc, 1, v6
    v_mov_b32 v{vWt}, s48
    v_mov_b32 v21, s49
    v_cndmask_b32 v{vWt}, v{vWt}, v21, vcc""")
    g(f"""
    s_cmp_eq_u32 s{sC}, 0
    s_cbranch_scc0 L_no_tagchk""")
    g.base(56, sWS, WS_ML)
    top, done = g.lab("tpoll"), g.lab("tdone")
    g(f"""
    v_lshlrev_b32 v16, 7, v0
    {top}:
    global_load_dword v18, v16, s[56:57] offset:4 sc1
    global_load_dword v19, v16, s[56:57] offset:36 sc1
    global_load_dword v20, v16, s[56:57] offset:68 sc1
    global_load_dword v21, v16, s[56:57] offset:100 sc1
    s_waitcnt vmcnt(0)
    v_xor_b32 v18, s{sTAG}, v18
    v_xor_b32 v19, s{sTAG}, v19
    v_xor_b32 v20, s{sTAG}, v20
    v_xor_b32 v21, s{sTAG}, v21
    v_or3_b32 v18, v18, v19, v20
    v_or_b32 v18, v18, v21
    v_cmp_ne_u32 vcc, 0, v18""")
    g.poll_tail(top, done, 4)
    g(f"""
    L_no_tagchk:
    s_cmp_eq_u32 s{sC}, 1
    s_cbranch_scc0 L_no_pf2""")
    g.prefetch_code(16)
    g("L_no_pf2:")
    g.mask(54, 0x0c0c); g.mask(56, 0x3030); g.mask(58, 0xc0c0)
    g(f"""
    s_lshl_b32 s43, s{sREG}, 10
    s_lshl_b32 s41, s{sC}, 7
    s_add_u32 s43, s43, s41""")
    g.base(60, sWS, WS_OP, 43)
    g(f"""
    v_bfe_u32 v15, v0, 1, 2
    v_lshlrev_b32 v15, 5, v15
    v_lshl_add_u32 v15, v6, 9, v15
    v_lshl_add_u32 v15, v5, 3, v15""")
    vloop(64)
    g.ts(7)
    g("s_nop 4")
    g.select4(16, vO, 54)
    g(f"""
    s_mov_b32 exec_lo, 0x00ff00ff
    s_mov_b32 exec_hi, 0x00ff00ff
    v_mul_f32 v16, v16, v{vWt}
    v_mul_f32 v17, v17, v{vWt}
    v_mul_f32 v18, v18, v{vWt}
    v_mul_f32 v19, v19, v{vWt}
    v_cvt_pk_bf16_f32 v16, v16, v17
    v_cvt_pk_bf16_f32 v17, v18, v19
    global_store_dwordx2 v15, v[16:17], s[60:61] sc1
    s_mov_b64 exec, -1
    s_cmp_lt_u32 s{sSPLIT}, 14
    s_cbranch_scc1 L_t1
    s_cmp_lt_u32 s{sU}, 28
    s_cbranch_scc1 L_t2""")
    g.endwave()

    g(f"""
    L_t1:
    s_setprio 0
    v_lshrrev_b32 v5, 4, v0
    v_bfe_u32 v8, v0, 2, 2
    v_lshl_add_u32 v8, v5, 3, v8
    v_lshlrev_b32 v8, 6, v8
    v_and_b32 v9, 3, v0
    v_lshl_add_u32 v8, v9, 3, v8
    s_lshl_b32 s43, s{sWAVE}, 12
    v_add_u32 v8, s43, v8
    v_and_b32 v9, 15, v0
    v_lshlrev_b32 v10, 10, v9
    v_lshl_add_u32 v10, v5, 4, v10
    s_lshl_b32 s43, s{sGRP}, 14
    s_lshl_b32 s41, s{sWAVE}, 7
    s_add_u32 s43, s43, s41""")
    g.base(60, sWS, WS_OP, 43)
    g("s_waitcnt lgkmcnt(0)\ns_barrier")
    g.ts(8)
    for ks in range(2):
        for nt in range(2):
            a = 32 + 8*ks + 4*nt
            g(f"ds_read_b64_tr_b16 v[{a}:{a+1}], v8 offset:{ks*2048 + nt*32}")
            g(f"ds_read_b64_tr_b16 v[{a+2}:{a+3}], v8 offset:{ks*2048 + nt*32 + 256}")
    top, done = g.lab("opoll"), g.lab("odone")
    g(f"""
    {top}:
    global_load_dwordx4 v[16:19], v10, s[60:61] sc1
    global_load_dwordx4 v[20:23], v10, s[60:61] offset:64 sc1
    s_waitcnt vmcnt(0)""")
    g.maxu_chain(24, range(16, 24))
    g(f"v_cmp_eq_u32 vcc, -1, v24")
    g.poll_tail(top, done, opt.get("sl1", 1))
    g.ts(9)
    g(f"""
    s_waitcnt lgkmcnt(0)
    v_mfma_f32_16x16x32_bf16 v[24:27], v[16:19], v[32:35], 0
    v_mfma_f32_16x16x32_bf16 v[28:31], v[16:19], v[36:39], 0
    v_mfma_f32_16x16x32_bf16 v[24:27], v[20:23], v[40:43], v[24:27]
    v_mfma_f32_16x16x32_bf16 v[28:31], v[20:23], v[44:47], v[28:31]
    v_lshrrev_b32 v12, 5, v0
    v_lshl_add_u32 v12, v12, 4, v9
    v_lshlrev_b32 v12, 5, v12
    s_lshl_b32 s43, s{sWAVE}, 2
    s_add_u32 s43, s43, {RED}
    v_add_u32 v12, s43, v12
    s_nop 1
    v_add_f32 v24, v24, v25
    v_add_f32 v26, v26, v27
    v_add_f32 v28, v28, v29
    v_add_f32 v30, v30, v31
    v_add_f32 v24, v24, v26
    v_add_f32 v28, v28, v30
    s_nop 1
    v_permlane32_swap_b32 v24, v28
    s_nop 1
    v_add_f32 v24, v24, v28""")
    g.xlane("v_add_f32", 24, 25, [], True, False)
    g(f"""
    ds_write_b32 v12, v24
    s_lshl_b32 s43, s{sKVH}, 1
    s_add_u32 s43, s43, s{sB}
    s_mul_i32 s43, s43, 1792
    s_lshl_b32 s41, s{sSPLIT}, 7
    s_add_u32 s43, s43, s41""")
    g.base(58, sWS, WS_A1, 43)
    g(f"""
    v_and_b32 v13, 31, v0
    v_lshlrev_b32 v12, 5, v13
    v_add_u32 v12, {RED}, v12
    v_lshlrev_b32 v13, 2, v13
    s_waitcnt lgkmcnt(0)
    s_barrier
    s_cmp_eq_u32 s{sWAVE}, 0
    s_cbranch_scc0 L_t1_end
    ds_read_b128 v[16:19], v12
    ds_read_b128 v[20:23], v12 offset:16
    s_mov_b32 exec_hi, 0
    s_waitcnt lgkmcnt(0)
    v_add_f32 v16, v16, v17
    v_add_f32 v18, v18, v19
    v_add_f32 v20, v20, v21
    v_add_f32 v22, v22, v23
    v_add_f32 v16, v16, v18
    v_add_f32 v20, v20, v22
    v_add_f32 v16, v16, v20
    global_store_dword v13, v16, s[58:59] sc1
    s_mov_b64 exec, -1
    L_t1_end:""")
    g.ts(10)
    g.endwave()

    vW1, vW2, vH = 64, 120, 152
    g(f"""
    L_t2:
    s_setprio 0
    v_lshrrev_b32 v5, 4, v0
    v_and_b32 v6, 1, v0
    v_bfe_u32 v8, v0, 2, 2
    v_lshl_add_u32 v8, v5, 3, v8
    v_and_b32 v9, 3, v0
    v_lshlrev_b32 v9, 3, v9
    s_cmp_eq_u32 s{sWAVE}, 7
    s_cbranch_scc1 L_fin""")
    g(f"""
    v_lshrrev_b32 v7, 5, v0
    v_mul_u32_u24 v7, 896, v7
    v_and_b32 v10, 31, v0
    v_lshl_add_u32 v7, v10, 2, v7
    s_lshl_b32 s43, s{sWAVE}, 7
    v_add_u32 v10, s43, v7
    global_load_dword v14, v10, s[{sX}:{sX+1}] {xpol}
    v_lshlrev_b32 v11, 1, v10
    s_lshl_b32 s43, s{sU}, 7
    s_and_b32 s41, s{sWAVE}, 3
    s_lshl_b32 s41, s41, 5
    s_add_u32 s43, s43, s41
    v_lshlrev_b32 v12, 3, v5
    v_add_u32 v12, s43, v12
    global_load_dwordx2 v[60:61], v12, s[{sB1}:{sB1+1}] {xpol}
    v_lshl_add_u32 v12, v8, 7, v9
    v_add_u32 v12, s41, v12
    v_mul_u32_u24 v13, 896, v8
    v_add_u32 v13, v13, v9
    s_lshl_b32 s43, s{sWAVE}, 7
    s_add_u32 s43, s43, {W2L}
    v_add_u32 v13, s43, v13""")
    g.base(60, sWS, WS_A1)
    g.base(62, sWS, WS_A1 + 4 * 3584)
    g("s_waitcnt lgkmcnt(0)\ns_barrier")
    g.ts(8)
    for ks in range(2):
        for t in range(4):
            a = vW2 + 16*ks + 4*t
            g(f"ds_read_b64_tr_b16 v[{a}:{a+1}], v13 offset:{ks*32*896 + t*32}")
            g(f"ds_read_b64_tr_b16 v[{a+2}:{a+3}], v13 offset:{ks*32*896 + t*32 + 4*896}")
    for j in range(14):
        a = vW1 + 4*j
        g(f"ds_read_b64_tr_b16 v[{a}:{a+1}], v12 offset:{j*4096}")
        g(f"ds_read_b64_tr_b16 v[{a+2}:{a+3}], v12 offset:{j*4096 + 512}")
    g(f"v_add_u32 v15, 7168, v11")
    top, done = g.lab("apoll"), g.lab("adone")
    g(f"{top}:")
    for k in range(8):
        b = 60 + 2 * (k // 4)
        va = 11 if (k & 2) == 0 else 15
        g(f"global_load_dwordx2 v[{16+2*k}:{17+2*k}], v{va}, s[{b}:{b+1}] offset:{(k&1)*3584} sc1")
    g("s_waitcnt vmcnt(0)")
    g.maxu_chain(32, range(16, 32))
    g(f"v_cmp_eq_u32 vcc, -1, v32")
    g.poll_tail(top, done, opt.get("sl2", 1))
    g.ts(9)
    for st in (8, 4, 2):
        for i in range(st):
            g(f"v_add_f32 v{16+i}, v{16+i}, v{16+st+i}")
    g(f"""
    v_cvt_pk_bf16_f32 v16, v16, v17
    v_lshlrev_b32 v18, 16, v14
    v_and_b32 v19, 0xffff0000, v14
    v_lshlrev_b32 v20, 16, v16
    v_and_b32 v21, 0xffff0000, v16
    v_add_f32 v18, v18, v20
    v_add_f32 v19, v19, v21
    v_cvt_pk_bf16_f32 v14, v18, v19
    v_add_u32 v10, {HB}, v10
    v_add_u32 v7, {HB}, v7
    ds_write_b32 v10, v14
    s_waitcnt lgkmcnt(0)
    s_barrier""")
    for j in range(7):
        g(f"ds_read_b32 v{16+j}, v7 offset:{128*j}")
    g(f"""
    v_lshlrev_b32 v56, 16, v14
    v_and_b32 v57, 0xffff0000, v14
    s_waitcnt lgkmcnt(0)""")
    g.ln_stats(16, 24, 40, 41, 42)
    g.ln_apply(56, 57, 40, 41, 14)
    g(f"""
    ds_write_b32 v10, v14 offset:{(XN - HB) & 0xffff}""" if XN > HB else f"""
    v_subrev_u32 v10, {HB - XN}, v10
    ds_write_b32 v10, v14""")
    g(f"""
    v_mul_u32_u24 v12, 896, v6
    v_lshl_add_u32 v12, v5, 4, v12
    v_add_u32 v12, {XN}, v12
    s_waitcnt lgkmcnt(0)
    s_barrier""")
    g.ts(10)
    g(f"""
    s_cmp_lt_u32 s{sWAVE}, 4
    s_cbranch_scc0 L_no_ffn1""")
    for j in range(14):
        g(f"ds_read_b128 v[{vH+4*j}:{vH+4*j+3}], v12 offset:{64*j}")
    g(f"""
    v_lshlrev_b32 v20, 16, v60
    v_and_b32 v21, 0xffff0000, v60
    v_lshlrev_b32 v22, 16, v61
    v_and_b32 v23, 0xffff0000, v61
    v_lshlrev_b32 v12, 7, v6
    v_lshl_add_u32 v12, v5, 3, v12
    s_lshl_b32 s43, s{sWAVE}, 5
    s_add_u32 s43, s43, {FB}
    v_add_u32 v12, s43, v12""")
    for j in range(14):
        c = "0" if j == 0 else "v[16:19]"
        g(f"s_waitcnt lgkmcnt({13-j})")
        g(f"v_mfma_f32_16x16x32_bf16 v[16:19], v[{vW1+4*j}:{vW1+4*j+3}], v[{vH+4*j}:{vH+4*j+3}], {c}")
    g(f"""
    s_nop 7
    v_cvt_pk_bf16_f32 v24, v16, v17
    v_cvt_pk_bf16_f32 v25, v18, v19
    v_lshlrev_b32 v16, 16, v24
    v_and_b32 v17, 0xffff0000, v24
    v_lshlrev_b32 v18, 16, v25
    v_and_b32 v19, 0xffff0000, v25
    v_add_f32 v16, v16, v20
    v_add_f32 v17, v17, v21
    v_add_f32 v18, v18, v22
    v_add_f32 v19, v19, v23
    v_cvt_pk_bf16_f32 v24, v16, v17
    v_cvt_pk_bf16_f32 v25, v18, v19
    v_lshlrev_b32 v16, 16, v24
    v_and_b32 v17, 0xffff0000, v24
    v_lshlrev_b32 v18, 16, v25
    v_and_b32 v19, 0xffff0000, v25
    v_max_f32 v16, 0, v16
    v_max_f32 v17, 0, v17
    v_max_f32 v18, 0, v18
    v_max_f32 v19, 0, v19
    v_mul_f32 v16, v16, v16
    v_mul_f32 v17, v17, v17
    v_mul_f32 v18, v18, v18
    v_mul_f32 v19, v19, v19
    v_cvt_pk_bf16_f32 v24, v16, v17
    v_cvt_pk_bf16_f32 v25, v18, v19
    ds_write_b64 v12, v[24:25]
    L_no_ffn1:
    v_lshlrev_b32 v12, 7, v6
    v_lshl_add_u32 v12, v5, 4, v12
    v_add_u32 v12, {FB}, v12""")
    g.mask(54, 0x0c0c); g.mask(56, 0x3030); g.mask(58, 0xc0c0)
    g(f"""
    s_mul_i32 s43, s{sU}, 3584
    s_lshl_b32 s41, s{sWAVE}, 8
    s_add_u32 s43, s43, s41""")
    g.base(60, sWS, WS_Y2, 43)
    g(f"""
    v_mul_u32_u24 v15, 1792, v6
    v_bfe_u32 v13, v0, 1, 2
    v_lshl_add_u32 v15, v13, 6, v15
    v_lshl_add_u32 v15, v5, 4, v15
    s_waitcnt lgkmcnt(0)
    s_barrier
    ds_read_b128 v[16:19], v12
    ds_read_b128 v[20:23], v12 offset:64
    s_waitcnt lgkmcnt(1)""")
    for t in range(4):
        g(f"v_mfma_f32_16x16x32_bf16 v[{32+4*t}:{35+4*t}], v[{vW2+4*t}:{vW2+4*t+3}], v[16:19], 0")
    g("s_waitcnt lgkmcnt(0)")
    for t in range(4):
        g(f"v_mfma_f32_16x16x32_bf16 v[{32+4*t}:{35+4*t}], v[{vW2+16+4*t}:{vW2+16+4*t+3}], v[20:23], v[{32+4*t}:{35+4*t}]")
    g("s_nop 5")
    g.select4(16, 32, 54)
    g(f"""
    s_mov_b32 exec_lo, 0x00ff00ff
    s_mov_b32 exec_hi, 0x00ff00ff
    global_store_dwordx4 v15, v[16:19], s[60:61] sc1
    s_mov_b64 exec, -1""")
    g.ts(11)
    g.endwave()

    g(f"""
    L_fin:
    s_cmp_ge_u32 s{sU}, 14
    s_cselect_b32 s41, 14, 0
    s_sub_u32 s41, s{sU}, s41
    s_lshl_b32 s41, s41, 6
    v_and_b32 v10, 7, v0
    v_lshlrev_b32 v10, 3, v10
    v_add_u32 v11, s41, v10
    global_load_dwordx2 v[40:41], v11, s[{sB2}:{sB2+1}] {xpol}
    s_lshl_b32 s43, s{sU}, 6
    v_add_u32 v12, s43, v10
    v_add_u32 v13, {HB}, v12
    v_lshrrev_b32 v14, 3, v0
    v_mul_u32_u24 v14, 3584, v14
    v_lshl_add_u32 v14, v12, 1, v14""")
    for i in range(4):
        g.base(54 + 2*i, sWS, WS_Y2 + i * 8 * 3584)
    g(f"""
    v_mov_b32 v28, 0
    v_mov_b32 v29, 0
    v_mov_b32 v30, 0
    v_mov_b32 v31, 0
    s_barrier
    s_barrier
    ds_read_b64 v[42:43], v13
    s_barrier
    s_barrier""")
    g.ts(11)
    top, done, skip = g.lab("ypoll"), g.lab("ydone"), g.lab("yskip")
    g(f"""
    {top}:
    global_load_dwordx4 v[16:19], v14, s[54:55] sc1
    global_load_dwordx4 v[20:23], v14, s[56:57] sc1
    global_load_dwordx4 v[24:27], v14, s[58:59] sc1
    s_mov_b64 s[62:63], exec
    s_mov_b32 exec_hi, 0
    s_cbranch_execz {skip}
    global_load_dwordx4 v[28:31], v14, s[60:61] sc1
    {skip}:
    s_mov_b64 exec, s[62:63]
    s_waitcnt vmcnt(0)""")
    g.maxu_chain(32, range(16, 32))
    g(f"v_cmp_eq_u32 vcc, -1, v32")
    g.poll_tail(top, done, opt.get("sl3", 1))
    g.ts(12)
    for i in range(8):
        g(f"v_add_f32 v{16+i}, v{16+i}, v{24+i}")
    for i in range(4):
        g(f"v_add_f32 v{16+i}, v{16+i}, v{20+i}")
    g("s_nop 0")
    for i in range(4):
        g(f"v_add_f32_dpp v{16+i}, v{16+i}, v{16+i} row_ror:8 row_mask:0xf bank_mask:0xf")
    for sw in ("16", "32"):
        for i in range(4):
            g(f"v_mov_b32 v{20+i}, v{16+i}")
        for i in range(4):
            g(("s_nop 0\n" if i == 3 else "") + f"v_permlane{sw}_swap_b32 v{16+i}, v{20+i}")
        for i in range(4):
            g(("s_nop 0\n" if i == 3 else "") + f"v_add_f32 v{16+i}, v{16+i}, v{20+i}")
    g(f"""
    s_waitcnt lgkmcnt(0)
    v_cvt_pk_bf16_f32 v24, v16, v17
    v_cvt_pk_bf16_f32 v25, v18, v19""")
    for src in (40, 42):
        g(f"""
        v_lshlrev_b32 v16, 16, v24
        v_and_b32 v17, 0xffff0000, v24
        v_lshlrev_b32 v18, 16, v25
        v_and_b32 v19, 0xffff0000, v25
        v_lshlrev_b32 v20, 16, v{src}
        v_and_b32 v21, 0xffff0000, v{src}
        v_lshlrev_b32 v22, 16, v{src+1}
        v_and_b32 v23, 0xffff0000, v{src+1}
        v_add_f32 v16, v16, v20
        v_add_f32 v17, v17, v21
        v_add_f32 v18, v18, v22
        v_add_f32 v19, v19, v23
        v_cvt_pk_bf16_f32 v24, v16, v17
        v_cvt_pk_bf16_f32 v25, v18, v19""")
    g(f"""
    s_mov_b64 exec, 0xff
    global_store_dwordx2 v12, v[24:25], s[{sOUT}:{sOUT+1}]
    s_cmp_eq_u32 s{sU}, 0
    s_cbranch_scc0 L_fin_end
    s_mov_b64 exec, 1
    s_add_u32 s43, s{sEPOCH}, 1
    v_mov_b32 v16, s43
    v_mov_b32 v17, {WS_EPOCH}
    global_store_dword v17, v16, s[{sWS}:{sWS+1}]
    L_fin_end:
    s_mov_b64 exec, -1""")
    g.ts(13)
    g.endwave()

    if opt.get("ts"):
        g(f"""
        L_dump:
        s_waitcnt vmcnt(0) lgkmcnt(0)""")
        g.ts(14)
        g(f"""
        s_getreg_b32 s{sTS+30}, hwreg(HW_REG_XCC_ID)
        s_lshl_b32 s43, s2, 3
        s_add_u32 s43, s43, s{sWAVE}
        s_lshl_b32 s43, s43, 6""")
        g.base(60, sWS, WS_TS, 43)
        g("s_mov_b64 exec, 1\nv_mov_b32 v1, 0")
        for k in range(16):
            g(f"v_mov_b32 v16, s{sTS+2*k}\nglobal_store_dword v1, v16, s[60:61] offset:{4*k}")
    g("L_exit:\ns_endpgm\nL_code_end:")

    ref = open(f"cdna_kernels/{NAME}.s.ref").read().split("\n")
    head = []
    for line in ref:
        if line.startswith("; @launch"):
            head.append(f"; @launch grid=(256,1,1) block=(512,1,1) lds={LDS_SIZE}")
            break
        head.append(line)
    out = "\n".join(head) + f"""
.amdgcn_target "amdgcn-amd-amdhsa--gfx950"
.text
.globl {KN}
.p2align 8
.type {KN},@function
{KN}:
""" + "\n".join(g.L) + f"""
.section .rodata,"a"
.p2align 6
.amdhsa_kernel {KN}
  .amdhsa_next_free_vgpr 256
  .amdhsa_next_free_sgpr 102
  .amdhsa_accum_offset 256
  .amdhsa_group_segment_fixed_size 0
  .amdhsa_kernarg_size 104
  .amdhsa_user_sgpr_count 2
  .amdhsa_user_sgpr_kernarg_segment_ptr 1
  .amdhsa_system_sgpr_workgroup_id_x 1
.end_amdhsa_kernel
"""
    return out


if __name__ == "__main__":
    out = sys.argv[1]
    opt = {}
    for a in sys.argv[2:]:
        k, v = a.split("=", 1)
        if k == "W":
            v = [int(c, 16) for c in v]
            v = (v * 8)[:8]
        elif v.lstrip("-").isdigit():
            v = int(v)
        opt[k] = v
    open(out, "w").write(gen(opt))
```

```python
import struct
import sys

NAME = "sequential_preLN__gqa_block_cached__dense_activation_squared_relu__decode"
KN = NAME + "_kernel"


def f32(x):
    return "0x%08x" % struct.unpack("<I", struct.pack("<f", x))[0]


PAIR = 1056
TILE = 8 * PAIR
SLOT = 4 * TILE
NSLOT = 4
RING_END = NSLOT * SLOT
PBUF = RING_END
WQS = RING_END
XN = WQS + 16384
QL = XN + 1792
HB = QL + 1024
FB = HB + 1792
RED = FB + 256
FLAGS = RED + 1024
LANDED = FLAGS
CONSUMED = FLAGS + 16
STAGE = FLAGS + 32
QRDY = FLAGS + 48
WRDY = FLAGS + 52
LAM = FLAGS + 128
WT = FLAGS + 144
STATM = FLAGS + 64
STATL = FLAGS + 96
LDS_SIZE = FLAGS + 256
W2L = 57344

WS_EPOCH = 0
WS_QG = 0x1000
WS_ML = 0x10000
WS_OP = 0x20000
WS_A1 = 0x60000
WS_Y2 = 0x70000
WS_QP = 0x90000
WS_PG = 0xd0000
PGSTR = 1280
WS_TS = 0x100000

TAGC = 0x9E3779B9
SPIN = 1 << 20

sX, sK, sV, sWQ, sWO, sW1, sB1 = 4, 6, 8, 10, 12, 16, 18
sW2, sB2, sOUT, sDBG, sWS = 20, 22, 24, 26, 28
sWAVE = 3
sKVH, sJ, sB, sSPLIT, sGRP, sREG, sU = 30, 31, 36, 37, 38, 39, 50
sSRD = 32
sEPOCH, sTAG, sTO = 51, 52, 53
sSGRP, sSSPL = 14, 15
sTS = 64


class Gen:
    def __init__(self, opt):
        self.L = []
        self.opt = opt
        self.uid = 0

    def __call__(self, s):
        for line in s.split("\n"):
            line = line.strip()
            if line:
                self.L.append(line if line.endswith(":") else "    " + line)

    def lab(self, base):
        self.uid += 1
        return f"L_{base}_{self.uid}"

    def ts(self, k):
        if self.opt.get("ts"):
            self(f"s_waitcnt lgkmcnt(0)\ns_memrealtime s[{sTS+2*k}:{sTS+2*k+1}]\ns_waitcnt lgkmcnt(0)")

    def ts_init(self):
        if self.opt.get("ts"):
            for k in range(16):
                self(f"s_mov_b64 s[{sTS+2*k}:{sTS+2*k+1}], 0")

    def endwave(self):
        if self.opt.get("ts"):
            self("s_branch L_dump")
        else:
            self("s_endpgm")

    def srd(self, ptr, size, off=None):
        if off is None:
            self(f"s_mov_b32 s{sSRD}, s{ptr}\ns_and_b32 s{sSRD+1}, s{ptr+1}, 0xffff")
        else:
            self(f"s_add_u32 s{sSRD}, s{ptr}, s{off}\ns_addc_u32 s{sSRD+1}, s{ptr+1}, 0\ns_and_b32 s{sSRD+1}, s{sSRD+1}, 0xffff")
        self(f"s_mov_b32 s{sSRD+2}, {size}\ns_mov_b32 s{sSRD+3}, 0x20000")

    def base(self, dst, ptr, const=0, off=None):
        self(f"s_add_u32 s{dst}, s{ptr}, {const}\ns_addc_u32 s{dst+1}, s{ptr+1}, 0")
        if off is not None:
            self(f"s_add_u32 s{dst}, s{dst}, s{off}\ns_addc_u32 s{dst+1}, s{dst+1}, 0")

    def mask(self, dst, pat16):
        v = pat16 | (pat16 << 16)
        self(f"s_mov_b32 s{dst}, 0x{v:08x}\ns_mov_b32 s{dst+1}, 0x{v:08x}")

    def lds_wait4(self, vzero, off, target, sseen, vt, sleep=1):
        top, done = self.lab("w4"), self.lab("w4d")
        self(f"""
        s_cmp_ge_u32 s{sseen}, {target}
        s_cbranch_scc1 {done}
        {top}:
        ds_read_b128 v[{vt}:{vt+3}], v{vzero} offset:{off - FLAGS}
        s_waitcnt lgkmcnt(0)
        v_min3_u32 v{vt}, v{vt}, v{vt+1}, v{vt+2}
        v_min_u32 v{vt}, v{vt}, v{vt+3}
        s_nop 0
        v_readfirstlane_b32 s{sseen}, v{vt}
        s_cmp_ge_u32 s{sseen}, {target}
        s_cbranch_scc1 {done}
        s_sleep {sleep}
        s_sub_u32 s{sTO}, s{sTO}, 1
        s_cbranch_scc0 {top}
        s_mov_b32 s{sTO}, 0
        {done}:""")

    def lds_wait1(self, vaddr, off, target, sseen, vt, sleep=1):
        top, done = self.lab("w1"), self.lab("w1d")
        self(f"""
        s_cmp_ge_u32 s{sseen}, {target}
        s_cbranch_scc1 {done}
        {top}:
        ds_read_b32 v{vt}, v{vaddr} offset:{off - FLAGS}
        s_waitcnt lgkmcnt(0)
        v_readfirstlane_b32 s{sseen}, v{vt}
        s_cmp_ge_u32 s{sseen}, {target}
        s_cbranch_scc1 {done}
        s_sleep {sleep}
        s_sub_u32 s{sTO}, s{sTO}, 1
        s_cbranch_scc0 {top}
        s_mov_b32 s{sTO}, 0
        {done}:""")

    def poll_tail(self, top, done, sleep):
        self(f"""
        s_cmp_eq_u64 vcc, 0
        s_cbranch_scc1 {done}
        s_mov_b64 exec, vcc
        s_sleep {sleep}
        s_sub_u32 s{sTO}, s{sTO}, 1
        s_cbranch_scc0 {top}
        s_mov_b32 s{sTO}, 0
        {done}:
        s_mov_b64 exec, -1""")

    def maxu_chain(self, dst, regs):
        regs = list(regs)
        first = True
        while regs:
            if first:
                a = regs[:3]; regs = regs[3:]
                if len(a) == 3:
                    self(f"v_max3_u32 v{dst}, v{a[0]}, v{a[1]}, v{a[2]}")
                else:
                    self(f"v_max_u32 v{dst}, v{a[0]}, v{a[1]}")
                first = False
            else:
                a = regs[:2]; regs = regs[2:]
                if len(a) == 2:
                    self(f"v_max3_u32 v{dst}, v{dst}, v{a[0]}, v{a[1]}")
                else:
                    self(f"v_max_u32 v{dst}, v{dst}, v{a[0]}")

    def xlane(self, op, v, vt, rors, s16, s32):
        for r in rors:
            self(f"s_nop 1\n{op}_dpp v{v}, v{v}, v{v} row_ror:{r} row_mask:0xf bank_mask:0xf")
        if s16:
            self(f"v_mov_b32 v{vt}, v{v}\ns_nop 1\nv_permlane16_swap_b32 v{v}, v{vt}\ns_nop 1\n{op} v{v}, v{v}, v{vt}")
        if s32:
            self(f"v_mov_b32 v{vt}, v{v}\ns_nop 1\nv_permlane32_swap_b32 v{v}, v{vt}\ns_nop 1\n{op} v{v}, v{v}, v{vt}")

    def rbf(self, v):
        self(f"v_cvt_pk_bf16_f32 v{v}, v{v}, v{v}\nv_and_b32 v{v}, 0xffff0000, v{v}")

    def ln_stats(self, vp, vx, vmu, vrs, vt):
        for j in range(7):
            self(f"v_lshlrev_b32 v{vx+2*j}, 16, v{vp+j}\nv_and_b32 v{vx+2*j+1}, 0xffff0000, v{vp+j}")
        self(f"v_add_f32 v{vmu}, v{vx}, v{vx+1}\nv_add_f32 v{vt}, v{vx+2}, v{vx+3}")
        for j in range(4, 14, 2):
            self(f"v_add_f32 v{vmu}, v{vmu}, v{vx+j}\nv_add_f32 v{vt}, v{vt}, v{vx+j+1}")
        self(f"v_add_f32 v{vmu}, v{vmu}, v{vt}")
        self.xlane("v_add_f32", vmu, vt, [1, 2, 4, 8], True, False)
        self(f"v_mul_f32 v{vmu}, {f32(1.0/448)}, v{vmu}")
        self(f"v_sub_f32 v{vt}, v{vx}, v{vmu}\nv_mul_f32 v{vrs}, v{vt}, v{vt}")
        for j in range(1, 14):
            self(f"v_sub_f32 v{vt}, v{vx+j}, v{vmu}\nv_fmac_f32 v{vrs}, v{vt}, v{vt}")
        self.xlane("v_add_f32", vrs, vt, [1, 2, 4, 8], True, False)
        self(f"v_mul_f32 v{vrs}, {f32(1.0/448)}, v{vrs}")
        self.rbf(vrs)
        self(f"v_add_f32 v{vrs}, {f32(1e-5)}, v{vrs}")
        self.rbf(vrs)
        self(f"v_sqrt_f32 v{vrs}, v{vrs}")
        self.rbf(vmu)
        self.rbf(vrs)
        self(f"v_rcp_f32 v{vrs}, v{vrs}\ns_nop 0")

    def ln_apply(self, va, vb, vmu, vrs, vout):
        self(f"""
        v_sub_f32 v{va}, v{va}, v{vmu}
        v_sub_f32 v{vb}, v{vb}, v{vmu}
        v_cvt_pk_bf16_f32 v{vout}, v{va}, v{vb}
        v_lshlrev_b32 v{va}, 16, v{vout}
        v_and_b32 v{vb}, 0xffff0000, v{vout}
        v_mul_f32 v{va}, v{va}, v{vrs}
        v_mul_f32 v{vb}, v{vb}, v{vrs}
        v_cvt_pk_bf16_f32 v{vout}, v{va}, v{vb}""")

    def select4(self, dst, acc, m):
        for r in range(4):
            self(f"v_cndmask_b32 v{dst+r}, v{acc+r}, v{acc+4+r}, s[{m}:{m+1}]")
        for r in range(4):
            self(f"v_cndmask_b32 v{dst+r}, v{dst+r}, v{acc+8+r}, s[{m+2}:{m+3}]")
        for r in range(4):
            self(f"v_cndmask_b32 v{dst+r}, v{dst+r}, v{acc+12+r}, s[{m+4}:{m+5}]")

    def prefetch_code(self, vt):
        pc = self.lab("pc")
        self(f"""
        s_getpc_b64 s[62:63]
        {pc}:
        s_sub_u32 s62, s62, {pc}-{KN}
        s_subb_u32 s63, s63, 0
        v_lshlrev_b32 v{vt}, 7, v0
        v_min_u32 v{vt+1}, L_code_end-{KN}-4, v{vt}
        global_load_dword v166, v{vt+1}, s[62:63] {self.opt.get('ppol', '')}
        v_add_u32 v{vt}, 8192, v{vt}
        v_min_u32 v{vt+1}, L_code_end-{KN}-4, v{vt}
        global_load_dword v167, v{vt+1}, s[62:63] {self.opt.get('ppol', '')}""")


def gen(opt):
    g = Gen(opt)
    WMIN, WMAX = opt.get("wmin", 3), opt.get("wmax", 7)
    LAM0 = opt.get("lam", 10)
    LAMMAX = 8 * (WMAX - WMIN)
    wpol = opt.get("wpol", "nt")
    qpol = opt.get("qpol", "nt")
    xpol = opt.get("xpol", "")
    ppol = opt.get("ppol", "")
    vF = 2

    clr = opt.get("clr", 2)

    def clears():
        g("v_mov_b32 v12, -1\nv_mov_b32 v13, -1\nv_mov_b32 v14, -1\nv_mov_b32 v15, -1")
        g(f"s_lshl_b32 s43, s{sREG}, 10")
        g.base(54, sWS, WS_OP, 43)
        g(f"""
        global_store_dwordx4 v1, v[12:15], s[54:55] sc1
        s_cmp_lt_u32 s{sSPLIT}, 14
        s_cbranch_scc0 L_clr_not_t1
        s_lshl_b32 s43, s{sKVH}, 1
        s_add_u32 s43, s43, s{sB}
        s_mul_i32 s43, s43, 1792
        s_lshl_b32 s41, s{sSPLIT}, 7
        s_add_u32 s43, s43, s41""")
        g.base(58, sWS, WS_A1, 43)
        g(f"""
        s_mov_b64 exec, 0xff
        global_store_dwordx4 v1, v[12:15], s[58:59] sc1
        s_mov_b64 exec, -1
        s_branch L_clr_done
        L_clr_not_t1:
        s_mul_i32 s43, s{sU}, 3584""")
        g.base(58, sWS, WS_Y2, 43)
        g(f"""
        global_store_dwordx4 v1, v[12:15], s[58:59] sc1
        global_store_dwordx4 v1, v[12:15], s[58:59] offset:1024 sc1
        global_store_dwordx4 v1, v[12:15], s[58:59] offset:2048 sc1
        global_store_dwordx4 v1, v[12:15], s[58:59] offset:2560 sc1
        L_clr_done:""")

    g(f"""
    s_cmp_ge_u32 s2, 256
    s_cbranch_scc1 L_exit
    s_load_dwordx16 s[4:19], s[0:1], 0
    s_load_dwordx8 s[20:27], s[0:1], 64
    s_load_dwordx2 s[28:29], s[0:1], 96""")
    pc = g.lab("pc")
    g(f"""
    s_getpc_b64 s[62:63]
    {pc}:
    s_sub_u32 s62, s62, {pc}-{KN}
    s_subb_u32 s63, s63, 0
    v_lshlrev_b32 v1, 5, v0
    v_min_u32 v1, L_code_end-{KN}-4, v1
    global_load_dword v167, v1, s[62:63] {ppol}""")
    g.ts_init()
    if opt.get("ts"):
        g(f"s_memrealtime s[{sTS}:{sTS+1}]")
    g(f"""
    v_lshrrev_b32 v1, 6, v0
    v_and_b32 v0, 63, v0
    v_readfirstlane_b32 s{sWAVE}, v1
    v_mov_b32 v{vF}, {FLAGS}
    v_lshl_add_u32 v3, v0, 2, v{vF}
    v_mov_b32 v4, 0
    ds_write_b32 v3, v4
    s_and_b32 s{sKVH}, s2, 7
    s_lshr_b32 s{sJ}, s2, 3
    s_lshr_b32 s{sB}, s{sJ}, 4
    s_and_b32 s{sSPLIT}, s{sJ}, 15
    s_lshl_b32 s{sGRP}, s{sB}, 3
    s_add_u32 s{sGRP}, s{sGRP}, s{sKVH}
    s_mov_b32 s{sREG}, s2
    s_lshl_b32 s{sU}, s{sGRP}, 1
    s_add_u32 s{sU}, s{sU}, s{sSPLIT}
    s_sub_u32 s{sU}, s{sU}, 14
    s_mov_b32 s{sTO}, {SPIN}
    v_lshlrev_b32 v1, 4, v0
    s_lshl_b32 s44, s{sREG}, 20
    s_waitcnt lgkmcnt(0)
    s_barrier
    s_lshr_b32 s{sSGRP}, s{sREG}, 4
    s_and_b32 s{sSSPL}, s{sREG}, 15
    s_cmp_ge_u32 s{sWAVE}, 4
    s_cbranch_scc1 L_notloader""")

    g("s_setprio 3")
    g.ts(3)
    g.srd(sK, 1 << 20, 44)
    g(f"""
    s_mov_b32 s40, 0
    s_lshl_b32 s41, s{sWAVE}, 13
    s_mul_i32 s47, s{sWAVE}, {TILE}
    s_mov_b32 s46, 0
    s_mov_b32 s45, 0
    s_mov_b32 s49, {opt.get("lamst", LAM0)}
    s_mov_b32 s55, 0
    s_lshl_b32 s43, s{sWAVE}, 2
    v_add_u32 v3, s43, v{vF}
    L_row:
    s_add_u32 s42, s46, s47""")
    PH = [0, 4, 2, 6, 1, 5, 3, 7]
    for j in range(8):
        go = g.lab("go")
        g(f"""
        s_add_u32 m0, s42, {j*PAIR}
        s_add_u32 s43, s41, {j*1024}
        s_sub_u32 s54, s55, {WMAX - j}
        s_waitcnt vmcnt({WMAX})""")
        for w in range(WMAX - 1, WMIN - 1, -1):
            g(f"""
            s_cmp_ge_u32 s49, {8*(w+1-WMIN) - PH[j]}
            s_cbranch_scc1 {go}
            s_add_u32 s54, s54, 1
            s_waitcnt vmcnt({w})""")
        g(f"""
        {go}:
        buffer_load_dwordx4 v1, s[{sSRD}:{sSRD+3}], s43 offen nt lds
        s_max_i32 s54, s54, 0
        v_mov_b32 v4, s54
        ds_write_b32 v3, v4 offset:{LANDED-FLAGS}""")
        if j == 6:
            g(f"ds_read_b128 v[8:11], v{vF} offset:{CONSUMED-FLAGS}\nds_read_b32 v12, v3 offset:{LAM-FLAGS}")
    g(f"""
    s_add_u32 s40, s40, 1
    s_add_u32 s55, s55, 8
    s_add_u32 s41, s41, 32768
    s_add_u32 s46, s46, {SLOT}
    s_cmp_eq_u32 s46, {RING_END}
    s_cselect_b32 s46, 0, s46
    s_waitcnt lgkmcnt(1)
    v_min3_u32 v8, v8, v9, v10
    v_min_u32 v8, v8, v11
    v_readfirstlane_b32 s49, v12
    v_readfirstlane_b32 s45, v8
    s_sub_u32 s48, s40, {NSLOT-1}
    s_max_i32 s48, s48, 0
    s_add_u32 s49, s49, {LAM0}""")
    if opt.get("xb"):
        g(f"""
        s_cmp_ge_u32 s40, {opt["xb"]}
        s_cselect_b32 s43, {opt.get("lamb", LAMMAX)}, 0
        s_max_u32 s49, s49, s43""")
    if opt.get("xs"):
        g(f"""
        s_cmp_lt_u32 s40, {opt["xs"]}
        s_cselect_b32 s49, {opt.get("lamst", LAM0)}, s49""")
    g.lds_wait4(vF, CONSUMED, "s48", 45, 8)
    if opt.get("ts"):
        for rr, kk in ((1, 4), (8, 5)):
            lb = g.lab("tsk")
            g(f"s_cmp_eq_u32 s40, {rr}\ns_cbranch_scc0 {lb}")
            g.ts(kk)
            g(f"{lb}:")
    g(f"""
    s_cmp_eq_u32 s40, 32
    s_cbranch_scc0 L_row_nosw""")
    g.ts(1)
    g.srd(sV, 1 << 20, 44)
    g(f"""
    s_lshl_b32 s41, s{sWAVE}, 13
    L_row_nosw:
    s_cmp_lt_u32 s40, 64
    s_cbranch_scc1 L_row""")
    g(f"""
    v_mov_b32 v4, 512
    s_cmp_lt_u32 s{sSPLIT}, 14
    s_cbranch_scc0 L_ld_not_t1""")
    g.srd(sWO, 4096 * 896)
    g(f"""
    v_lshrrev_b32 v5, 2, v0
    v_mul_u32_u24 v5, 896, v5
    v_and_b32 v6, 3, v0
    v_lshl_add_u32 v5, v6, 4, v5
    s_lshl_b32 s41, s{sKVH}, 2
    s_add_u32 s41, s41, s{sWAVE}
    s_mul_i32 s41, s41, {128*896}
    s_lshl_b32 s43, s{sSPLIT}, 6
    s_add_u32 s41, s41, s43
    s_lshl_b32 s42, s{sWAVE}, 13""")
    for j in range(8):
        g(f"""
        s_add_u32 m0, s42, {j*1024}
        s_add_u32 s43, s41, {j*16*896}
        buffer_load_dwordx4 v5, s[{sSRD}:{sSRD+3}], s43 offen {wpol} lds""")
    g(f"""
    s_waitcnt vmcnt(8)
    ds_write_b32 v3, v4 offset:{LANDED-FLAGS}""")
    g.ts(2)
    g(f"""
    s_waitcnt vmcnt(0)
    s_branch L_t1
    L_ld_not_t1:
    s_cmp_lt_u32 s{sU}, 28
    s_cbranch_scc1 L_ld_t2
    s_waitcnt vmcnt(0)
    ds_write_b32 v3, v4 offset:{LANDED-FLAGS}""")
    g.ts(2)
    g.endwave()
    g("L_ld_t2:")
    g.srd(sW1, 448 * 3584)
    g(f"""
    v_lshrrev_b32 v5, 3, v0
    v_mul_u32_u24 v5, 3584, v5
    v_and_b32 v6, 7, v0
    v_lshl_add_u32 v5, v6, 4, v5
    s_mul_i32 s41, s{sWAVE}, {7*8*3584}
    s_lshl_b32 s43, s{sU}, 7
    s_add_u32 s41, s41, s43
    s_mul_i32 s42, s{sWAVE}, {7*1024}""")
    for row in range(2):
        if row:
            g.lds_wait4(vF, CONSUMED, 62, 45, 8)
        for j in range(7):
            idx = row * 28 + j
            g(f"""
            s_add_u32 m0, s42, {idx*1024}
            s_add_u32 s43, s41, {idx*8*3584}
            buffer_load_dwordx4 v5, s[{sSRD}:{sSRD+3}], s43 offen {wpol} lds""")
        if row == 0:
            g(f"s_waitcnt vmcnt(7)\nds_write_b32 v3, v4 offset:{LANDED-FLAGS}")
            g.ts(2)
    g.srd(sW2, 1792 * 896)
    g(f"""
    s_mul_i32 s41, s{sU}, {64*896}
    s_add_u32 s41, s41, s42""")
    for row in range(2):
        g.lds_wait4(vF, CONSUMED, 63 + row, 45, 8)
        for j in range(7):
            idx = row * 28 + j
            g(f"""
            s_add_u32 m0, s42, {W2L + idx*1024}
            s_add_u32 s43, s41, {idx*1024}
            buffer_load_dwordx4 v1, s[{sSRD}:{sSRD+3}], s43 offen {wpol} lds""")
    g("s_waitcnt vmcnt(0)\ns_branch L_t2")

    g(f"""
    L_notloader:
    s_load_dword s{sEPOCH}, s[{sWS}:{sWS+1}], {WS_EPOCH}
    v_lshrrev_b32 v5, 4, v0
    v_and_b32 v6, 1, v0
    s_cmp_lt_u32 s{sWAVE}, 8
    s_cbranch_scc1 L_consumer
    s_setprio 2
    v_lshrrev_b32 v7, 5, v0
    v_mul_u32_u24 v7, 896, v7
    v_and_b32 v8, 31, v0
    v_lshl_add_u32 v7, v8, 2, v7""")
    for j in range(7):
        g(f"global_load_dword v{16+j}, v7, s[{sX}:{sX+1}] offset:{128*j} {xpol}")
    g.srd(sWQ, 448 * 8192)
    g(f"""
    v_lshrrev_b32 v9, 3, v0
    v_lshlrev_b32 v9, 13, v9
    v_and_b32 v10, 7, v0
    v_lshl_add_u32 v9, v10, 4, v9
    s_and_b32 s47, s2, 3
    s_lshl_b32 s46, s47, 2
    s_min_u32 s46, s46, 11
    s_lshl_b32 s41, s46, 18
    s_lshr_b32 s43, s2, 2
    s_lshl_b32 s43, s43, 7
    s_add_u32 s41, s41, s43""")
    for j in range(16):
        if j == 12:
            g(f"s_cmp_ge_u32 s47, 2\ns_cbranch_scc1 L_q12")
        g(f"""
        s_mov_b32 m0, {WQS + j*1024}
        s_add_u32 s43, s41, {j*8*8192}
        buffer_load_dwordx4 v9, s[{sSRD}:{sSRD+3}], s43 offen {qpol} lds""")
    g(f"""
    s_waitcnt vmcnt(16)
    s_branch L_qx
    L_q12:
    s_waitcnt vmcnt(12)
    L_qx:""")
    g.ts(1)
    g.ln_stats(16, 24, 10, 11, 12)
    g(f"v_add_u32 v7, {XN}, v7")
    for j in range(7):
        g.ln_apply(24 + 2*j, 25 + 2*j, 10, 11, 16 + j)
        g(f"ds_write_b32 v7, v{16+j} offset:{128*j}")
    vXF, vWF, vQA = 40, 56, 120
    g(f"""
    v_mul_u32_u24 v8, 896, v6
    v_lshl_add_u32 v8, v5, 4, v8
    s_lshl_b32 s43, s46, 6
    s_add_u32 s43, s43, {XN}
    v_add_u32 v8, s43, v8
    v_bfe_u32 v9, v0, 2, 2
    v_lshl_add_u32 v9, v5, 3, v9
    v_lshlrev_b32 v9, 7, v9
    v_and_b32 v10, 3, v0
    v_lshl_add_u32 v9, v10, 3, v9
    v_add_u32 v9, {WQS}, v9""")
    for st in range(4):
        g(f"ds_read_b128 v[{vXF+4*st}:{vXF+4*st+3}], v8 offset:{64*st}")
    g("s_waitcnt vmcnt(0)")
    g.ts(2)
    for st in range(4):
        for nt in range(4):
            a = vWF + 16*st + 4*nt
            g(f"ds_read_b64_tr_b16 v[{a}:{a+1}], v9 offset:{4096*st + 32*nt}")
            g(f"ds_read_b64_tr_b16 v[{a+2}:{a+3}], v9 offset:{4096*st + 32*nt + 512}")
    g.mask(54, 0x0c0c); g.mask(56, 0x3030); g.mask(58, 0xc0c0); g.mask(48, 0xff00)
    g(f"s_lshl_b32 s43, s2, 10")
    g.base(60, sWS, WS_QP, 43)
    g(f"""
    v_bfe_u32 v10, v0, 1, 2
    v_lshlrev_b32 v10, 8, v10
    v_lshl_add_u32 v10, v6, 7, v10
    v_lshl_add_u32 v10, v5, 5, v10
    v_bfe_u32 v11, v0, 3, 1
    v_lshl_add_u32 v10, v11, 4, v10
    s_waitcnt lgkmcnt(0)
    s_add_u32 s{sTAG}, s{sEPOCH}, 0x{TAGC:08x}""")
    for st in range(4):
        if st == 3:
            g(f"s_cmp_ge_u32 s47, 2\ns_cbranch_scc1 L_q3steps")
        for nt in range(4):
            a = vWF + 16*st + 4*nt
            d = vQA + 4*nt
            c = "0" if st == 0 else f"v[{d}:{d+3}]"
            g(f"v_mfma_f32_16x16x32_bf16 v[{d}:{d+3}], v[{a}:{a+3}], v[{vXF+4*st}:{vXF+4*st+3}], {c}")
    g(f"""
    L_q3steps:
    v_mov_b32 v17, s{sTAG}
    v_mov_b32 v19, s{sTAG}
    s_nop 4""")
    g.select4(12, vQA, 54)
    g(f"""
    v_cndmask_b32 v16, v12, v14, s[48:49]
    v_cndmask_b32 v18, v13, v15, s[48:49]
    global_store_dwordx4 v10, v[16:19], s[60:61] sc1
    s_and_b32 s43, s2, 0xfc
    s_lshl_b32 s43, s43, 10
    s_lshl_b32 s41, s47, 8
    s_add_u32 s43, s43, s41""")
    g.base(60, sWS, WS_QP, 43)
    g(f"""
    v_and_b32 v10, 15, v0
    v_lshlrev_b32 v10, 4, v10
    v_lshl_add_u32 v10, v5, 10, v10""")
    g.ts(3)
    g("s_mov_b32 s45, 0")
    if opt.get("qd1", 16):
        g.lds_wait4(vF, LANDED, opt.get("qd1", 16), 45, 24, sleep=2)
    top, done = g.lab("ppoll"), g.lab("pdone")
    g(f"""
    {top}:
    global_load_dwordx4 v[20:23], v10, s[60:61] sc1
    s_waitcnt vmcnt(0)
    v_xor_b32 v21, s{sTAG}, v21
    v_xor_b32 v23, s{sTAG}, v23
    v_or_b32 v21, v21, v23
    v_cmp_ne_u32 vcc, 0, v21""")
    g.poll_tail(top, done, opt.get("qsl", 16))
    g.xlane("v_add_f32", 20, 21, [], True, True)
    g.xlane("v_add_f32", 22, 21, [], True, True)
    g(f"s_lshl_b32 s43, s2, 6")
    g.base(60, sWS, WS_QG, 43)
    g(f"""
    v_cvt_pk_bf16_f32 v16, v20, v22
    v_bfe_u32 v10, v0, 3, 1
    v_lshlrev_b32 v10, 14, v10
    v_and_b32 v11, 7, v0
    v_lshl_add_u32 v10, v11, 3, v10
    s_mov_b64 exec, 0xffff
    global_store_dwordx2 v10, v[16:17], s[60:61] sc1
    s_mov_b64 exec, -1""")
    g.ts(5)
    g(f"""
    v_mov_b32 v12, -1
    v_mov_b32 v13, -1
    v_mov_b32 v14, -1
    v_mov_b32 v15, -1
    s_lshl_b32 s43, s{sSGRP}, 11""")
    g.base(60, sWS, WS_QG, 43)
    if opt.get("qd2", 32):
        g.lds_wait4(vF, LANDED, opt.get("qd2", 32), 45, 24, sleep=2)
    top, done = g.lab("qpoll"), g.lab("qdone")
    g(f"""
    {top}:
    global_load_dwordx4 v[20:23], v1, s[60:61] sc1
    global_load_dwordx4 v[24:27], v1, s[60:61] offset:1024 sc1
    s_waitcnt vmcnt(0)
    v_xor_b32 v28, s{sTAG}, v21
    v_xor_b32 v29, s{sTAG}, v23
    v_xor_b32 v30, s{sTAG}, v25
    v_xor_b32 v31, s{sTAG}, v27
    v_or3_b32 v28, v28, v29, v30
    v_or_b32 v28, v28, v31
    v_cmp_ne_u32 vcc, 0, v28""")
    g.poll_tail(top, done, opt.get("qsl", 16))
    g(f"""
    v_mov_b32 v21, v22
    v_mov_b32 v25, v26
    v_lshlrev_b32 v8, 3, v0
    v_add_u32 v8, {QL}, v8
    v_mov_b32 v4, 1
    ds_write_b64 v8, v[20:21]
    ds_write_b64 v8, v[24:25] offset:512
    ds_write_b32 v{vF}, v4 offset:{QRDY-FLAGS}
    s_setprio 0""")
    g.ts(4)
    if clr == 1:
        clears()
    ctl = opt.get("ctl", 0)
    g.base(60, sWS, WS_PG)
    NS = opt.get("ns", 16)
    g(f"""
    s_lshl_b32 s43, s2, 7
    v_mov_b32 v20, s43
    v_mul_u32_u24 v21, 17, v0
    v_add_u32 v21, s2, v21
    v_and_b32 v22, 3, v0
    v_lshl_add_u32 v22, v22, 2, v{vF}
    s_and_b32 s54, s{sTAG}, 0xfffff000
    s_mov_b32 s45, 0
    s_mov_b32 s46, 0
    s_mov_b32 s40, 0""")

    def clampwrite():
        g(f"""
        v_max_f32 v13, {f32(float(opt.get("lo", 0) - LAM0))}, v13
        v_min_f32 v13, {f32(float(opt.get("hi", LAMMAX) - LAM0))}, v13
        v_rndne_f32 v13, v13
        v_cvt_i32_f32 v13, v13
        s_mov_b64 exec, 15
        ds_write_b32 v22, v13 offset:{LAM-FLAGS}
        s_mov_b64 exec, -1""")
        if opt.get("ts"):
            g(f"""
            v_readfirstlane_b32 s43, v13
            s_add_u32 s{sTS+24}, s{sTS+24}, s43
            s_add_u32 s{sTS+26}, s{sTS+26}, 1""")

    def control(end):
        top, skip, done = g.lab("ctl"), g.lab("ctlskip"), g.lab("ctldone")
        g(f"{top}:")
        g.lds_wait4(vF, LANDED, "s40", 45, 8, sleep=4)
        g(f"""
        s_cmp_ge_u32 s45, {end}
        s_cbranch_scc1 {done}
        s_add_u32 s40, s45, {opt.get("per", 8)}""")
        kp = opt.get("kp", 100) / 100.0
        if ctl == 1:
            g(f"""
            ds_read_b128 v[8:11], v{vF} offset:{LANDED-FLAGS}
            ds_read_b32 v12, v22 offset:{LANDED-FLAGS}
            s_waitcnt lgkmcnt(0)
            v_add3_u32 v8, v8, v9, v10
            v_add_u32 v8, v8, v11
            v_cvt_f32_u32 v12, v12
            v_cvt_f32_u32 v13, v8
            v_mul_f32 v13, 0.25, v13
            v_sub_f32 v13, v13, v12
            v_mul_f32 v13, {f32(kp)}, v13""".replace("0.25", f32(0.25)))
            clampwrite()
        if ctl == 2:
            g(f"""
            ds_read_b128 v[8:11], v{vF} offset:{LANDED-FLAGS}
            ds_read_b32 v12, v22 offset:{LANDED-FLAGS}
            v_add_u32 v21, 37, v21
            v_and_b32 v23, 255, v21
            v_lshlrev_b32 v23, 7, v23
            s_waitcnt lgkmcnt(0)
            v_add3_u32 v8, v8, v9, v10
            v_add3_u32 v8, v8, v11, s54
            s_mov_b64 exec, 1
            global_store_dword v20, v8, s[60:61] sc1
            s_mov_b64 exec, {(1 << NS) - 1}
            global_load_dword v13, v23, s[60:61] sc1
            v_cvt_f32_u32 v12, v12
            s_waitcnt vmcnt(0)
            v_xor_b32 v13, s54, v13
            v_cmp_lt_u32 vcc, 0xfff, v13
            v_cvt_f32_u32 v13, v13
            s_mov_b64 exec, -1
            s_cmp_eq_u64 vcc, 0
            s_cbranch_scc0 {top}""")
            if NS == 8:
                g("s_nop 1\nv_mov_b32_dpp v14, v13 row_shr:8 row_mask:0xf bank_mask:0xc\ns_mov_b64 exec, 0xff00\nv_mov_b32 v13, v14\ns_mov_b64 exec, -1")
            g.xlane("v_add_f32", 13, 14, [1, 2, 4, 8], False, False)
            bias = opt.get("bias", 4)
            g(f"""
            v_mul_f32 v13, {f32(1.0/64)}, v13
            v_sub_f32 v13, v13, v12
            v_add_f32 v13, {f32(float(bias))}, v13
            v_mul_f32 v13, {f32(kp)}, v13""")
            clampwrite()
        g(f"s_branch {top}\n{done}:")

    if ctl == 3:
        PER = opt.get("gper", 64)
        g(f"""
        s_lshr_b32 s43, s2, 4
        s_lshl_b32 s43, s43, 3
        s_and_b32 s41, s2, 7
        s_or_b32 s43, s43, s41
        s_mul_i32 s43, s43, {opt.get("phm", 37)}
        s_and_b32 s43, s43, 127
        s_mul_i32 s40, s43, {PER}
        s_lshr_b32 s40, s40, 7
        s_lshl_b32 s55, s2, 4
        s_and_b32 s55, s55, 128""")

        def control(end, apply=True):
            top, more, go, done = g.lab("ctl"), g.lab("ctlmore"), g.lab("ctlgo"), g.lab("ctldone")
            kp = opt.get("kp", 100) / 100.0
            g(f"""
            {top}:
            ds_read_b128 v[8:11], v{vF} offset:{LANDED-FLAGS}
            ds_read_b32 v12, v22 offset:{LANDED-FLAGS}
            s_waitcnt lgkmcnt(0)
            v_add3_u32 v8, v8, v9, v10
            v_add_u32 v8, v8, v11
            v_cvt_f32_u32 v12, v12
            v_readfirstlane_b32 s45, v8
            s_cmp_ge_u32 s45, {end * 4}
            s_cbranch_scc1 {done}
            s_cmp_ge_u32 s45, s40
            s_cbranch_scc1 {go}
            s_sleep 2
            s_sub_u32 s{sTO}, s{sTO}, 1
            s_cbranch_scc0 {top}
            s_mov_b32 s{sTO}, 0
            s_branch {done}
            {go}:
            s_mov_b32 s47, 0
            {more}:
            s_add_u32 s47, s47, 1
            s_add_u32 s40, s40, {PER}
            s_cmp_ge_u32 s45, s40
            s_cbranch_scc1 {more}
            s_atomic_add s47, s[{sDBG}:{sDBG+1}], s55 glc
            s_waitcnt lgkmcnt(0)""")
            if apply:
                g(f"""
                v_cvt_f32_u32 v13, s47
                v_mul_f32 v13, {f32(PER / 512.0)}, v13
                v_sub_f32 v13, v13, v12
                v_mul_f32 v13, {f32(kp)}, v13""")
                clampwrite()
            g(f"s_branch {top}\n{done}:")
        control(opt.get("cst", 12) * 8, False)
    if ctl == 4:
        g(f"""
        s_getreg_b32 s43, hwreg(HW_REG_XCC_ID)
        s_and_b32 s43, s43, 15
        s_lshl_b32 s43, s43, 10""")
        g.base(60, sWS, WS_PG, 43)
        g(f"""
        s_and_b32 s43, s2, 7
        s_lshl_b32 s43, s43, 5
        s_lshr_b32 s41, s2, 3
        s_add_u32 s41, s41, s43
        s_lshl_b32 s41, s41, 2
        v_mov_b32 v20, s41
        s_lshl_b32 s43, s43, 2
        v_and_b32 v21, 31, v0
        v_lshl_add_u32 v21, v21, 2, s43""")

        def control(end, apply=True):
            top, go, done = g.lab("ctl"), g.lab("ctlgo"), g.lab("ctldone")
            kp = opt.get("kp", 100) / 100.0
            g(f"""
            {top}:
            ds_read_b128 v[8:11], v{vF} offset:{LANDED-FLAGS}
            ds_read_b32 v12, v22 offset:{LANDED-FLAGS}
            s_waitcnt lgkmcnt(0)
            v_add3_u32 v8, v8, v9, v10
            v_add_u32 v8, v8, v11
            v_cvt_f32_u32 v12, v12
            v_readfirstlane_b32 s45, v8
            s_cmp_ge_u32 s45, {end * 4}
            s_cbranch_scc1 {done}
            s_cmp_ge_u32 s45, s40
            s_cbranch_scc1 {go}
            s_sleep 2
            s_sub_u32 s{sTO}, s{sTO}, 1
            s_cbranch_scc0 {top}
            s_mov_b32 s{sTO}, 0
            s_branch {done}
            {go}:
            s_add_u32 s40, s45, {opt.get("gper", 16)}
            v_or_b32 v9, s54, v8
            s_mov_b64 exec, 1
            global_store_dword v20, v9, s[60:61]
            s_mov_b64 exec, -1""")
            if apply:
                g(f"""
                global_load_dword v13, v21, s[60:61] sc1
                s_waitcnt vmcnt(0)
                v_xor_b32 v13, s54, v13
                v_cmp_lt_u32 vcc, 0xfff, v13
                s_nop 1
                v_cndmask_b32 v13, v13, v8, vcc
                v_cvt_f32_u32 v13, v13""")
                g.xlane("v_add_f32", 13, 14, [1, 2, 4, 8], True, False)
                g(f"""
                v_mul_f32 v13, {f32(1 / 128.0)}, v13
                v_sub_f32 v13, v13, v12
                v_add_f32 v13, {f32(opt.get("bias", 20) / 10.0)}, v13
                v_mul_f32 v13, {f32(kp)}, v13""")
                clampwrite()
            g(f"s_branch {top}\n{done}:")
        control(opt.get("cst", 10) * 8, False)
    if ctl == 5:
        g(f"""
        s_getreg_b32 s47, hwreg(HW_REG_XCC_ID)
        s_and_b32 s47, s47, 15
        s_lshl_b32 s47, s47, 10
        s_and_b32 s43, s2, 7
        s_lshl_b32 s41, s43, 8
        s_add_u32 s41, s41, 0x4000
        v_mov_b32 v23, s41
        s_lshl_b32 s43, s43, 7
        s_add_u32 s43, s43, s47
        s_lshr_b32 s41, s2, 3
        s_lshl_b32 s41, s41, 2
        s_add_u32 s41, s41, s43
        v_mov_b32 v20, s41
        v_lshl_add_u32 v21, v0, 2, s43
        v_and_b32 v8, 7, v0
        v_lshlrev_b32 v8, 8, v8
        v_add_u32 v8, 0x4000, v8
        s_mov_b32 exec_lo, 0
        v_mov_b32 v21, v8
        s_mov_b32 exec_lo, -1""")

        def control(end, apply=True):
            top, go, done, nolead = g.lab("ctl"), g.lab("ctlgo"), g.lab("ctldone"), g.lab("ctlnl")
            kp = opt.get("kp", 100) / 100.0
            g(f"""
            {top}:
            ds_read_b128 v[8:11], v{vF} offset:{LANDED-FLAGS}
            ds_read_b32 v12, v22 offset:{LANDED-FLAGS}
            s_waitcnt lgkmcnt(0)
            v_add3_u32 v8, v8, v9, v10
            v_add_u32 v8, v8, v11
            v_cvt_f32_u32 v12, v12
            v_readfirstlane_b32 s45, v8
            s_cmp_ge_u32 s45, {end * 4}
            s_cbranch_scc1 {done}
            s_cmp_ge_u32 s45, s40
            s_cbranch_scc1 {go}
            s_sleep 2
            s_sub_u32 s{sTO}, s{sTO}, 1
            s_cbranch_scc0 {top}
            s_mov_b32 s{sTO}, 0
            s_branch {done}
            {go}:
            s_add_u32 s40, s45, {opt.get("gper", 32)}
            v_or_b32 v9, s54, v8
            s_mov_b64 exec, 1
            global_store_dword v20, v9, s[60:61]
            s_mov_b64 exec, -1
            global_load_dword v13, v21, s[60:61] sc1
            s_waitcnt vmcnt(0)
            v_xor_b32 v13, s54, v13
            v_cmp_lt_u32 vcc, 0xfff, v13
            s_nop 1
            v_cndmask_b32 v13, v13, v8, vcc""")
            g.xlane("v_add_u32", 13, 14, [1, 2, 4, 8], True, False)
            g(f"""
            s_cmp_lt_u32 s2, 8
            s_cbranch_scc0 {nolead}
            v_lshrrev_b32 v9, 5, v13
            v_or_b32 v9, s54, v9
            s_mov_b64 exec, 1
            global_store_dword v23, v9, s[60:61] sc1
            s_mov_b64 exec, -1
            {nolead}:""")
            if apply:
                g(f"""
                v_readlane_b32 s43, v13, 32
                s_cmp_eq_u32 vcc_hi, 0
                s_cbranch_scc0 {top}
                v_cvt_f32_u32 v13, s43
                v_mul_f32 v13, {f32(1 / 128.0)}, v13
                v_sub_f32 v13, v13, v12
                v_add_f32 v13, {f32(opt.get("bias", 110) / 10.0)}, v13
                v_mul_f32 v13, {f32(kp)}, v13""")
                clampwrite()
            g(f"s_branch {top}\n{done}:")
        control(opt.get("cst", 11) * 8, False)
    control(35 * 8)
    g.lds_wait4(vF, STAGE, 3, 46, 8)
    g(f"""
    v_lshl_add_u32 v15, v6, 4, v{vF}
    ds_read_b128 v[8:11], v15 offset:{STATM-FLAGS}
    ds_read_b128 v[24:27], v15 offset:{STATL-FLAGS}
    s_lshl_b32 s43, s{sREG}, 5""")
    g.base(56, sWS, WS_ML, 43)
    g(f"""
    v_mov_b32 v17, s{sTAG}
    v_mov_b32 v19, s{sTAG}
    s_waitcnt lgkmcnt(0)
    v_max3_f32 v16, v8, v9, v10
    v_max_f32 v16, v16, v11
    v_add_f32 v24, v24, v25
    v_add_f32 v26, v26, v27
    v_add_f32 v18, v24, v26
    s_mov_b64 exec, 3
    s_waitcnt vmcnt(0)
    global_store_dwordx4 v1, v[16:19], s[56:57] sc1
    s_mov_b64 exec, -1""")
    control(46 * 8)
    g.base(56, sWS, WS_ML)
    top, done = g.lab("tpoll"), g.lab("tdone")
    g(f"""
    v_lshlrev_b32 v16, 7, v0
    {top}:
    global_load_dword v24, v16, s[56:57] offset:4 sc1
    global_load_dword v25, v16, s[56:57] offset:36 sc1
    global_load_dword v26, v16, s[56:57] offset:68 sc1
    global_load_dword v27, v16, s[56:57] offset:100 sc1
    s_waitcnt vmcnt(0)
    v_xor_b32 v24, s{sTAG}, v24
    v_xor_b32 v25, s{sTAG}, v25
    v_xor_b32 v26, s{sTAG}, v26
    v_xor_b32 v27, s{sTAG}, v27
    v_or3_b32 v24, v24, v25, v26
    v_or_b32 v24, v24, v27
    v_cmp_ne_u32 vcc, 0, v24""")
    g.poll_tail(top, done, 4)
    g(f"s_lshl_b32 s43, s{sSGRP}, 9")
    g.base(56, sWS, WS_ML, 43)
    top, done = g.lab("mlpoll"), g.lab("mldone")
    g(f"""
    v_and_b32 v16, 15, v0
    v_lshlrev_b32 v15, 5, v16
    v_and_b32 v17, 1, v5
    v_lshl_add_u32 v15, v17, 4, v15
    {top}:
    global_load_dwordx4 v[24:27], v15, s[56:57] sc1
    s_waitcnt vmcnt(0)
    v_xor_b32 v25, s{sTAG}, v25
    v_xor_b32 v27, s{sTAG}, v27
    v_or_b32 v25, v25, v27
    v_cmp_ne_u32 vcc, 0, v25""")
    g.poll_tail(top, done, 4)
    g(f"v_mov_b32 v25, v24")
    g.xlane("v_max_f32", 25, 27, [1, 2, 4, 8], False, False)
    g(f"""
    v_sub_f32 v24, v24, v25
    v_mul_f32 v24, {f32(1.4426950408889634/16)}, v24
    v_exp_f32 v24, v24
    s_nop 0
    v_mul_f32 v26, v24, v26""")
    g.xlane("v_add_f32", 26, 27, [1, 2, 4, 8], False, False)
    g(f"""
    v_rcp_f32 v26, v26
    v_lshl_add_u32 v17, v17, 2, v{vF}
    v_mul_f32 v24, v24, v26
    v_cmp_eq_u32 vcc, s{sSSPL}, v16
    v_mov_b32 v4, 1
    s_mov_b64 exec, vcc
    ds_write_b32 v17, v24 offset:{WT-FLAGS}
    s_mov_b64 exec, -1
    ds_write_b32 v{vF}, v4 offset:{WRDY-FLAGS}""")
    g.prefetch_code(16)
    if ctl >= 3:
        control(opt.get("cre", 49) * 8, False)
    control(opt.get("cend", 61) * 8)
    g.endwave()

    sC = 47
    sSEEN, sSTG = 45, 46
    vQ, vS, vD, vA = 16, 48, 64, 68
    NPRE = opt.get("npre", 3)
    vPRE = [68, 100, 132][:NPRE]
    g(f"""
    L_consumer:
    s_sub_u32 s{sC}, s{sWAVE}, 4
    s_lshl_b32 s43, s{sC}, 2
    v_add_u32 v3, s43, v{vF}
    s_mov_b32 s{sSEEN}, 0
    s_mov_b32 s{sSTG}, 0
    v_and_b32 v8, 7, v0
    v_mul_u32_u24 v8, {PAIR}, v8
    v_bfe_u32 v9, v0, 3, 1
    v_lshl_add_u32 v8, v9, 9, v8
    v_lshl_add_u32 v8, v5, 4, v8
    s_mul_i32 s43, s{sC}, {TILE}
    v_add_u32 v9, s43, v8""")
    if clr == 2:
        g(f"s_cmp_eq_u32 s{sC}, 0\ns_cbranch_scc0 L_clr_done")
        clears()
    for t in range(NPRE):
        g.lds_wait1(3, LANDED, 8 * (t + 1), sSEEN, 10)
        g(f"v_add_u32 v8, {(t % NSLOT) * SLOT}, v9\nv_mov_b32 v4, {t+1}")
        for i in range(8):
            g(f"ds_read_b128 v[{vPRE[t]+4*i}:{vPRE[t]+4*i+3}], v8 offset:{64*i}")
        g(f"ds_write_b32 v3, v4 offset:{CONSUMED-FLAGS}")
    g.lds_wait1(vF, QRDY, 1, sSTG, 8)
    g("s_waitcnt vmcnt(0)")
    g(f"""
    v_lshlrev_b32 v8, 9, v6
    v_lshl_add_u32 v8, v5, 4, v8
    v_add_u32 v8, {QL}, v8""")
    for i in range(8):
        g(f"ds_read_b128 v[{vQ+4*i}:{vQ+4*i+3}], v8 offset:{64*i}")
    g(f"""
    s_mov_b32 s40, {NPRE}
    s_mov_b32 s42, {(NPRE % NSLOT) * SLOT}
    s_waitcnt lgkmcnt(0)""")
    g.mask(48, 0x0003)
    for t in range(NPRE):
        for i in range(8):
            c = "0" if i == 0 else f"v[{vD}:{vD+3}]"
            g(f"v_mfma_f32_16x16x32_bf16 v[{vD}:{vD+3}], v[{vPRE[t]+4*i}:{vPRE[t]+4*i+3}], v[{vQ+4*i}:{vQ+4*i+3}], {c}")
        g("s_nop 7")
        for r in range(4):
            g(f"v_cndmask_b32 v{vS+r}, v{vS+r}, v{vD+r}, s[48:49]")
        g("s_lshl_b64 s[48:49], s[48:49], 2")
    for G in range(4):
        top = g.lab("krow")
        if G:
            g.mask(48, 0x0003)
        g(f"""
        {top}:
        s_add_u32 s40, s40, 1
        s_lshl_b32 s41, s40, 3""")
        g.lds_wait1(3, LANDED, "s41", sSEEN, 10)
        g(f"v_add_u32 v8, s42, v9\nv_mov_b32 v4, s40")
        for i in range(8):
            g(f"ds_read_b128 v[{vA+4*i}:{vA+4*i+3}], v8 offset:{64*i}")
        g(f"""
        ds_write_b32 v3, v4 offset:{CONSUMED-FLAGS}
        s_add_u32 s42, s42, {SLOT}
        s_cmp_eq_u32 s42, {RING_END}
        s_cselect_b32 s42, 0, s42""")
        for i in range(8):
            c = "0" if i == 0 else f"v[{vD}:{vD+3}]"
            g(f"s_waitcnt lgkmcnt({8-i})")
            g(f"v_mfma_f32_16x16x32_bf16 v[{vD}:{vD+3}], v[{vA+4*i}:{vA+4*i+3}], v[{vQ+4*i}:{vQ+4*i+3}], {c}")
        g("s_nop 7")
        for r in range(4):
            g(f"v_cndmask_b32 v{vS+4*G+r}, v{vS+4*G+r}, v{vD+r}, s[48:49]")
        g(f"""
        s_lshl_b64 s[48:49], s[48:49], 2
        s_and_b32 s43, s40, 7
        s_cbranch_scc1 {top}""")
    g.ts(5)
    for i in range(8):
        g(f"v_cvt_pk_bf16_f32 v{vA+i}, v{vS+2*i}, v{vS+2*i+1}")
    for i in range(8):
        g(f"v_lshlrev_b32 v{vS+2*i}, 16, v{vA+i}\nv_and_b32 v{vS+2*i+1}, 0xffff0000, v{vA+i}")
    vM, vL = 12, 13
    g(f"v_max3_f32 v{vM}, v{vS}, v{vS+1}, v{vS+2}")
    for i in range(3, 15, 2):
        g(f"v_max3_f32 v{vM}, v{vM}, v{vS+i}, v{vS+i+1}")
    g(f"v_max_f32 v{vM}, v{vM}, v{vS+15}")
    g.xlane("v_max_f32", vM, 10, [2, 4, 8], True, True)
    g(f"""
    v_lshl_add_u32 v14, v6, 4, v3
    v_lshl_add_u32 v15, v6, 4, v{vF}
    v_mov_b32 v4, 2
    ds_write_b32 v14, v{vM} offset:{STATM-FLAGS}
    ds_write_b32 v3, v4 offset:{STAGE-FLAGS}""")
    g.lds_wait4(vF, STAGE, 2, sSTG, 16)
    g(f"""
    ds_read_b128 v[16:19], v15 offset:{STATM-FLAGS}
    s_mov_b32 s43, {f32(1.4426950408889634/16)}
    s_waitcnt lgkmcnt(0)
    v_max3_f32 v{vM}, v16, v17, v18
    v_max_f32 v{vM}, v{vM}, v19""")
    for i in range(16):
        g(f"v_sub_f32 v{vS+i}, v{vS+i}, v{vM}")
    for i in range(16):
        g(f"v_mul_f32 v{vS+i}, s43, v{vS+i}")
    for i in range(16):
        g(f"v_exp_f32 v{vS+i}, v{vS+i}")
    g(f"v_add_f32 v{vL}, v{vS}, v{vS+1}\nv_add_f32 v10, v{vS+2}, v{vS+3}")
    for i in range(4, 16, 2):
        g(f"v_add_f32 v{vL}, v{vL}, v{vS+i}\nv_add_f32 v10, v10, v{vS+i+1}")
    g(f"v_add_f32 v{vL}, v{vL}, v10")
    g.xlane("v_add_f32", vL, 10, [2, 4, 8], True, True)
    for i in range(8):
        g(f"v_cvt_pk_bf16_f32 v{vA+i}, v{vS+2*i}, v{vS+2*i+1}")
    g(f"""
    v_bfe_u32 v8, v0, 1, 3
    v_lshlrev_b32 v8, 8, v8
    v_lshl_add_u32 v8, v6, 6, v8
    v_lshl_add_u32 v8, v5, 4, v8
    s_lshr_b32 s43, s{sC}, 1
    s_lshl_b32 s43, s43, 7
    s_and_b32 s41, s{sC}, 1
    s_lshl_b32 s41, s41, 3
    s_add_u32 s43, s43, s41
    s_add_u32 s43, s43, {PBUF}
    v_add_u32 v8, s43, v8
    v_mov_b32 v4, 3
    ds_write_b32 v14, v{vL} offset:{STATL-FLAGS}""")
    for G in range(4):
        g(f"ds_write_b64 v8, v[{vA+2*G}:{vA+2*G+1}] offset:{G*2048}")
    g(f"ds_write_b32 v3, v4 offset:{STAGE-FLAGS}")
    vP, vO = 32, 100
    g(f"""
    v_bfe_u32 v8, v0, 2, 3
    v_mul_u32_u24 v8, {PAIR}, v8
    v_lshrrev_b32 v9, 5, v0
    v_lshl_add_u32 v8, v9, 9, v8
    v_and_b32 v9, 3, v0
    v_lshl_add_u32 v8, v9, 3, v8
    s_lshl_b32 s43, s{sC}, 7
    v_add_u32 v9, s43, v8
    v_lshlrev_b32 v11, 6, v6
    v_lshl_add_u32 v11, v5, 4, v11
    v_add_u32 v11, {PBUF}, v11
    s_mov_b32 s{sSEEN}, 0""")
    for r in range(16):
        g(f"v_mov_b32 v{vO+r}, 0")
    g.lds_wait4(vF, STAGE, 3, sSTG, 16)
    g.ts(6)

    def vloop(end):
        top = g.lab("vrow")
        g(f"""
        {top}:
        s_add_u32 s40, s40, 1
        s_lshl_b32 s41, s40, 3""")
        g.lds_wait4(vF, LANDED, "s41", sSEEN, 16)
        g(f"v_add_u32 v8, s42, v9\nv_mov_b32 v4, s40")
        for pr in range(2):
            g(f"ds_read_b128 v[{vP+4*pr}:{vP+4*pr+3}], v11 offset:{128*pr}")
            for T in range(4):
                a = vA + 16*pr + 4*T
                g(f"ds_read_b64_tr_b16 v[{a}:{a+1}], v8 offset:{(2*pr)*TILE + 32*T}")
                g(f"ds_read_b64_tr_b16 v[{a+2}:{a+3}], v8 offset:{(2*pr+1)*TILE + 32*T}")
        g(f"""
        ds_write_b32 v3, v4 offset:{CONSUMED-FLAGS}
        v_add_u32 v11, 256, v11
        s_add_u32 s42, s42, {SLOT}
        s_cmp_eq_u32 s42, {RING_END}
        s_cselect_b32 s42, 0, s42""")
        for pr in range(2):
            for T in range(4):
                a = vA + 16*pr + 4*T
                need = 9*pr + 1 + 2*(T+1)
                g(f"s_waitcnt lgkmcnt({min(19-need, 15)})")
                g(f"v_mfma_f32_16x16x32_bf16 v[{vO+4*T}:{vO+4*T+3}], v[{a}:{a+3}], v[{vP+4*pr}:{vP+4*pr+3}], v[{vO+4*T}:{vO+4*T+3}]")
        g(f"""
        s_cmp_lt_u32 s40, {end}
        s_cbranch_scc1 {top}""")

    vloop(60)
    vWt = 14
    g(f"s_mov_b32 s{sSTG}, 0")
    g.lds_wait1(vF, WRDY, 1, sSTG, 16)
    g(f"""
    v_lshl_add_u32 v15, v6, 2, v{vF}
    ds_read_b32 v{vWt}, v15 offset:{WT-FLAGS}""")
    g.mask(54, 0x0c0c); g.mask(56, 0x3030); g.mask(58, 0xc0c0)
    g(f"""
    s_lshl_b32 s43, s{sREG}, 10
    s_lshl_b32 s41, s{sC}, 7
    s_add_u32 s43, s43, s41""")
    g.base(60, sWS, WS_OP, 43)
    g(f"""
    v_bfe_u32 v15, v0, 1, 2
    v_lshlrev_b32 v15, 5, v15
    v_lshl_add_u32 v15, v6, 9, v15
    v_lshl_add_u32 v15, v5, 3, v15""")
    vloop(64)
    g.ts(7)
    g("s_nop 4")
    g.select4(16, vO, 54)
    g(f"""
    s_mov_b32 exec_lo, 0x00ff00ff
    s_mov_b32 exec_hi, 0x00ff00ff
    v_mul_f32 v16, v16, v{vWt}
    v_mul_f32 v17, v17, v{vWt}
    v_mul_f32 v18, v18, v{vWt}
    v_mul_f32 v19, v19, v{vWt}
    v_cvt_pk_bf16_f32 v16, v16, v17
    v_cvt_pk_bf16_f32 v17, v18, v19
    global_store_dwordx2 v15, v[16:17], s[60:61] sc1
    s_mov_b64 exec, -1
    s_cmp_lt_u32 s{sSPLIT}, 14
    s_cbranch_scc1 L_t1
    s_cmp_lt_u32 s{sU}, 28
    s_cbranch_scc1 L_t2""")
    g.endwave()

    g(f"""
    L_t1:
    s_setprio 0
    v_lshrrev_b32 v5, 4, v0
    v_bfe_u32 v8, v0, 2, 2
    v_lshl_add_u32 v8, v5, 3, v8
    v_lshlrev_b32 v8, 6, v8
    v_and_b32 v9, 3, v0
    v_lshl_add_u32 v8, v9, 3, v8
    s_lshl_b32 s43, s{sWAVE}, 12
    v_add_u32 v8, s43, v8
    v_and_b32 v9, 15, v0
    v_lshlrev_b32 v10, 10, v9
    v_lshl_add_u32 v10, v5, 4, v10
    s_lshl_b32 s43, s{sGRP}, 14
    s_lshl_b32 s41, s{sWAVE}, 7
    s_add_u32 s43, s43, s41""")
    g.base(60, sWS, WS_OP, 43)
    g("s_waitcnt lgkmcnt(0)\ns_barrier")
    g.ts(8)
    for ks in range(2):
        for nt in range(2):
            a = 32 + 8*ks + 4*nt
            g(f"ds_read_b64_tr_b16 v[{a}:{a+1}], v8 offset:{ks*2048 + nt*32}")
            g(f"ds_read_b64_tr_b16 v[{a+2}:{a+3}], v8 offset:{ks*2048 + nt*32 + 256}")
    top, done = g.lab("opoll"), g.lab("odone")
    g(f"""
    {top}:
    global_load_dwordx4 v[16:19], v10, s[60:61] sc1
    global_load_dwordx4 v[20:23], v10, s[60:61] offset:64 sc1
    s_waitcnt vmcnt(0)""")
    g.maxu_chain(24, range(16, 24))
    g(f"v_cmp_eq_u32 vcc, -1, v24")
    g.poll_tail(top, done, opt.get("sl1", 1))
    g.ts(9)
    g(f"""
    s_waitcnt lgkmcnt(0)
    v_mfma_f32_16x16x32_bf16 v[24:27], v[16:19], v[32:35], 0
    v_mfma_f32_16x16x32_bf16 v[28:31], v[16:19], v[36:39], 0
    v_mfma_f32_16x16x32_bf16 v[24:27], v[20:23], v[40:43], v[24:27]
    v_mfma_f32_16x16x32_bf16 v[28:31], v[20:23], v[44:47], v[28:31]
    v_lshrrev_b32 v12, 5, v0
    v_lshl_add_u32 v12, v12, 4, v9
    v_lshlrev_b32 v12, 5, v12
    s_lshl_b32 s43, s{sWAVE}, 2
    s_add_u32 s43, s43, {RED}
    v_add_u32 v12, s43, v12
    s_nop 1
    v_add_f32 v24, v24, v25
    v_add_f32 v26, v26, v27
    v_add_f32 v28, v28, v29
    v_add_f32 v30, v30, v31
    v_add_f32 v24, v24, v26
    v_add_f32 v28, v28, v30
    s_nop 1
    v_permlane32_swap_b32 v24, v28
    s_nop 1
    v_add_f32 v24, v24, v28""")
    g.xlane("v_add_f32", 24, 25, [], True, False)
    g(f"""
    ds_write_b32 v12, v24
    s_lshl_b32 s43, s{sKVH}, 1
    s_add_u32 s43, s43, s{sB}
    s_mul_i32 s43, s43, 1792
    s_lshl_b32 s41, s{sSPLIT}, 7
    s_add_u32 s43, s43, s41""")
    g.base(58, sWS, WS_A1, 43)
    g(f"""
    v_and_b32 v13, 31, v0
    v_lshlrev_b32 v12, 5, v13
    v_add_u32 v12, {RED}, v12
    v_lshlrev_b32 v13, 2, v13
    s_waitcnt lgkmcnt(0)
    s_barrier
    s_cmp_eq_u32 s{sWAVE}, 0
    s_cbranch_scc0 L_t1_end
    ds_read_b128 v[16:19], v12
    ds_read_b128 v[20:23], v12 offset:16
    s_mov_b32 exec_hi, 0
    s_waitcnt lgkmcnt(0)
    v_add_f32 v16, v16, v17
    v_add_f32 v18, v18, v19
    v_add_f32 v20, v20, v21
    v_add_f32 v22, v22, v23
    v_add_f32 v16, v16, v18
    v_add_f32 v20, v20, v22
    v_add_f32 v16, v16, v20
    global_store_dword v13, v16, s[58:59] sc1
    s_mov_b64 exec, -1
    L_t1_end:""")
    g.ts(10)
    g.endwave()

    vW1, vW2 = 64, 120
    g(f"""
    L_t2:
    s_setprio 0
    v_lshrrev_b32 v5, 4, v0
    v_and_b32 v6, 1, v0
    v_bfe_u32 v8, v0, 2, 2
    v_lshl_add_u32 v8, v5, 3, v8
    v_and_b32 v9, 3, v0
    v_lshlrev_b32 v9, 3, v9
    s_cmp_eq_u32 s{sWAVE}, 7
    s_cbranch_scc1 L_fin""")
    g(f"""
    v_lshrrev_b32 v7, 5, v0
    v_mul_u32_u24 v7, 896, v7
    v_and_b32 v10, 31, v0
    v_lshl_add_u32 v7, v10, 2, v7
    s_lshl_b32 s43, s{sWAVE}, 7
    v_add_u32 v10, s43, v7
    global_load_dword v14, v10, s[{sX}:{sX+1}] {xpol}
    v_lshlrev_b32 v11, 1, v10
    s_lshl_b32 s43, s{sU}, 7
    s_and_b32 s41, s{sWAVE}, 3
    s_lshl_b32 s41, s41, 5
    s_add_u32 s43, s43, s41
    v_lshlrev_b32 v12, 3, v5
    v_add_u32 v12, s43, v12
    global_load_dwordx2 v[60:61], v12, s[{sB1}:{sB1+1}] {xpol}
    v_lshl_add_u32 v12, v8, 7, v9
    v_add_u32 v12, s41, v12
    v_mul_u32_u24 v13, 896, v8
    v_add_u32 v13, v13, v9
    s_lshl_b32 s43, s{sWAVE}, 7
    s_add_u32 s43, s43, {W2L}
    v_add_u32 v13, s43, v13""")
    g.base(60, sWS, WS_A1)
    g.base(62, sWS, WS_A1 + 4 * 3584)
    g("s_waitcnt lgkmcnt(0)\ns_barrier")
    g.ts(8)
    for ks in range(2):
        for t in range(4):
            a = vW2 + 16*ks + 4*t
            g(f"ds_read_b64_tr_b16 v[{a}:{a+1}], v13 offset:{ks*32*896 + t*32}")
            g(f"ds_read_b64_tr_b16 v[{a+2}:{a+3}], v13 offset:{ks*32*896 + t*32 + 4*896}")
    for j in range(14):
        a = vW1 + 4*j
        g(f"ds_read_b64_tr_b16 v[{a}:{a+1}], v12 offset:{j*4096}")
        g(f"ds_read_b64_tr_b16 v[{a+2}:{a+3}], v12 offset:{j*4096 + 512}")
    g(f"v_add_u32 v15, 7168, v11")
    top, done = g.lab("apoll"), g.lab("adone")
    g(f"{top}:")
    for k in range(8):
        b = 60 + 2 * (k // 4)
        va = 11 if (k & 2) == 0 else 15
        g(f"global_load_dwordx2 v[{16+2*k}:{17+2*k}], v{va}, s[{b}:{b+1}] offset:{(k&1)*3584} sc1")
    g("s_waitcnt vmcnt(0)")
    g.maxu_chain(32, range(16, 32))
    g(f"v_cmp_eq_u32 vcc, -1, v32")
    g.poll_tail(top, done, opt.get("sl2", 1))
    g.ts(9)
    for st in (8, 4, 2):
        for i in range(st):
            g(f"v_add_f32 v{16+i}, v{16+i}, v{16+st+i}")
    g(f"""
    v_cvt_pk_bf16_f32 v16, v16, v17
    v_lshlrev_b32 v18, 16, v14
    v_and_b32 v19, 0xffff0000, v14
    v_lshlrev_b32 v20, 16, v16
    v_and_b32 v21, 0xffff0000, v16
    v_add_f32 v18, v18, v20
    v_add_f32 v19, v19, v21
    v_cvt_pk_bf16_f32 v14, v18, v19
    v_add_u32 v10, {HB}, v10
    v_add_u32 v7, {HB}, v7
    ds_write_b32 v10, v14
    s_waitcnt lgkmcnt(0)
    s_barrier""")
    for j in range(7):
        g(f"ds_read_b32 v{16+j}, v7 offset:{128*j}")
    g(f"""
    v_lshlrev_b32 v56, 16, v14
    v_and_b32 v57, 0xffff0000, v14
    s_waitcnt lgkmcnt(0)""")
    g.ln_stats(16, 24, 40, 41, 42)
    g.ln_apply(56, 57, 40, 41, 14)
    g(f"""
    ds_write_b32 v10, v14 offset:{(XN - HB) & 0xffff}""" if XN > HB else f"""
    v_subrev_u32 v10, {HB - XN}, v10
    ds_write_b32 v10, v14""")
    g(f"""
    v_mul_u32_u24 v12, 896, v6
    v_lshl_add_u32 v12, v5, 4, v12
    v_add_u32 v12, {XN}, v12
    s_waitcnt lgkmcnt(0)
    s_barrier""")
    g.ts(10)
    g(f"""
    s_cmp_lt_u32 s{sWAVE}, 4
    s_cbranch_scc0 L_no_ffn1""")
    vHF = [16 + 4*j for j in range(10)] + [152 + 4*j for j in range(4)]
    for j in range(14):
        g(f"ds_read_b128 v[{vHF[j]}:{vHF[j]+3}], v12 offset:{64*j}")
    g(f"""
    v_lshlrev_b32 v12, 7, v6
    v_lshl_add_u32 v12, v5, 3, v12
    s_lshl_b32 s43, s{sWAVE}, 5
    s_add_u32 s43, s43, {FB}
    v_add_u32 v12, s43, v12""")
    for j in range(14):
        c = "0" if j == 0 else "v[56:59]"
        g(f"s_waitcnt lgkmcnt({13-j})")
        g(f"v_mfma_f32_16x16x32_bf16 v[56:59], v[{vW1+4*j}:{vW1+4*j+3}], v[{vHF[j]}:{vHF[j]+3}], {c}")
    g(f"""
    v_lshlrev_b32 v20, 16, v60
    v_and_b32 v21, 0xffff0000, v60
    v_lshlrev_b32 v22, 16, v61
    v_and_b32 v23, 0xffff0000, v61
    s_nop 3
    v_cvt_pk_bf16_f32 v24, v56, v57
    v_cvt_pk_bf16_f32 v25, v58, v59
    v_lshlrev_b32 v16, 16, v24
    v_and_b32 v17, 0xffff0000, v24
    v_lshlrev_b32 v18, 16, v25
    v_and_b32 v19, 0xffff0000, v25
    v_add_f32 v16, v16, v20
    v_add_f32 v17, v17, v21
    v_add_f32 v18, v18, v22
    v_add_f32 v19, v19, v23
    v_cvt_pk_bf16_f32 v24, v16, v17
    v_cvt_pk_bf16_f32 v25, v18, v19
    v_lshlrev_b32 v16, 16, v24
    v_and_b32 v17, 0xffff0000, v24
    v_lshlrev_b32 v18, 16, v25
    v_and_b32 v19, 0xffff0000, v25
    v_max_f32 v16, 0, v16
    v_max_f32 v17, 0, v17
    v_max_f32 v18, 0, v18
    v_max_f32 v19, 0, v19
    v_mul_f32 v16, v16, v16
    v_mul_f32 v17, v17, v17
    v_mul_f32 v18, v18, v18
    v_mul_f32 v19, v19, v19
    v_cvt_pk_bf16_f32 v24, v16, v17
    v_cvt_pk_bf16_f32 v25, v18, v19
    ds_write_b64 v12, v[24:25]
    L_no_ffn1:
    v_lshlrev_b32 v12, 7, v6
    v_lshl_add_u32 v12, v5, 4, v12
    v_add_u32 v12, {FB}, v12""")
    g.mask(54, 0x0c0c); g.mask(56, 0x3030); g.mask(58, 0xc0c0)
    g(f"""
    s_mul_i32 s43, s{sU}, 3584
    s_lshl_b32 s41, s{sWAVE}, 8
    s_add_u32 s43, s43, s41""")
    g.base(60, sWS, WS_Y2, 43)
    g(f"""
    v_mul_u32_u24 v15, 1792, v6
    v_bfe_u32 v13, v0, 1, 2
    v_lshl_add_u32 v15, v13, 6, v15
    v_lshl_add_u32 v15, v5, 4, v15
    s_waitcnt lgkmcnt(0)
    s_barrier
    ds_read_b128 v[16:19], v12
    ds_read_b128 v[20:23], v12 offset:64
    s_waitcnt lgkmcnt(1)""")
    for t in range(4):
        g(f"v_mfma_f32_16x16x32_bf16 v[{32+4*t}:{35+4*t}], v[{vW2+4*t}:{vW2+4*t+3}], v[16:19], 0")
    g("s_waitcnt lgkmcnt(0)")
    for t in range(4):
        g(f"v_mfma_f32_16x16x32_bf16 v[{32+4*t}:{35+4*t}], v[{vW2+16+4*t}:{vW2+16+4*t+3}], v[20:23], v[{32+4*t}:{35+4*t}]")
    g("s_nop 5")
    g.select4(16, 32, 54)
    g(f"""
    s_mov_b32 exec_lo, 0x00ff00ff
    s_mov_b32 exec_hi, 0x00ff00ff
    global_store_dwordx4 v15, v[16:19], s[60:61] sc1
    s_mov_b64 exec, -1""")
    g.ts(11)
    g.endwave()

    g(f"""
    L_fin:
    s_cmp_ge_u32 s{sU}, 14
    s_cselect_b32 s41, 14, 0
    s_sub_u32 s41, s{sU}, s41
    s_lshl_b32 s41, s41, 6
    v_and_b32 v10, 7, v0
    v_lshlrev_b32 v10, 3, v10
    v_add_u32 v11, s41, v10
    global_load_dwordx2 v[40:41], v11, s[{sB2}:{sB2+1}] {xpol}
    s_lshl_b32 s43, s{sU}, 6
    v_add_u32 v12, s43, v10
    v_add_u32 v13, {HB}, v12
    v_lshrrev_b32 v14, 3, v0
    v_mul_u32_u24 v14, 3584, v14
    v_lshl_add_u32 v14, v12, 1, v14""")
    for i in range(4):
        g.base(54 + 2*i, sWS, WS_Y2 + i * 8 * 3584)
    g(f"""
    v_mov_b32 v28, 0
    v_mov_b32 v29, 0
    v_mov_b32 v30, 0
    v_mov_b32 v31, 0
    s_barrier
    s_barrier
    ds_read_b64 v[42:43], v13
    s_barrier
    s_barrier""")
    g.ts(11)
    top, done, skip = g.lab("ypoll"), g.lab("ydone"), g.lab("yskip")
    g(f"""
    {top}:
    global_load_dwordx4 v[16:19], v14, s[54:55] sc1
    global_load_dwordx4 v[20:23], v14, s[56:57] sc1
    global_load_dwordx4 v[24:27], v14, s[58:59] sc1
    s_mov_b64 s[62:63], exec
    s_mov_b32 exec_hi, 0
    s_cbranch_execz {skip}
    global_load_dwordx4 v[28:31], v14, s[60:61] sc1
    {skip}:
    s_mov_b64 exec, s[62:63]
    s_waitcnt vmcnt(0)""")
    g.maxu_chain(32, range(16, 32))
    g(f"v_cmp_eq_u32 vcc, -1, v32")
    g.poll_tail(top, done, opt.get("sl3", 1))
    g.ts(12)
    for i in range(8):
        g(f"v_add_f32 v{16+i}, v{16+i}, v{24+i}")
    for i in range(4):
        g(f"v_add_f32 v{16+i}, v{16+i}, v{20+i}")
    g("s_nop 0")
    for i in range(4):
        g(f"v_add_f32_dpp v{16+i}, v{16+i}, v{16+i} row_ror:8 row_mask:0xf bank_mask:0xf")
    for sw in ("16", "32"):
        for i in range(4):
            g(f"v_mov_b32 v{20+i}, v{16+i}")
        for i in range(4):
            g(("s_nop 0\n" if i == 3 else "") + f"v_permlane{sw}_swap_b32 v{16+i}, v{20+i}")
        for i in range(4):
            g(("s_nop 0\n" if i == 3 else "") + f"v_add_f32 v{16+i}, v{16+i}, v{20+i}")
    g(f"""
    s_waitcnt lgkmcnt(0)
    v_cvt_pk_bf16_f32 v24, v16, v17
    v_cvt_pk_bf16_f32 v25, v18, v19""")
    for src in (40, 42):
        g(f"""
        v_lshlrev_b32 v16, 16, v24
        v_and_b32 v17, 0xffff0000, v24
        v_lshlrev_b32 v18, 16, v25
        v_and_b32 v19, 0xffff0000, v25
        v_lshlrev_b32 v20, 16, v{src}
        v_and_b32 v21, 0xffff0000, v{src}
        v_lshlrev_b32 v22, 16, v{src+1}
        v_and_b32 v23, 0xffff0000, v{src+1}
        v_add_f32 v16, v16, v20
        v_add_f32 v17, v17, v21
        v_add_f32 v18, v18, v22
        v_add_f32 v19, v19, v23
        v_cvt_pk_bf16_f32 v24, v16, v17
        v_cvt_pk_bf16_f32 v25, v18, v19""")
    g(f"""
    s_mov_b64 exec, 0xff
    global_store_dwordx2 v12, v[24:25], s[{sOUT}:{sOUT+1}]
    s_cmp_eq_u32 s{sU}, 0
    s_cbranch_scc0 L_fin_end
    s_mov_b64 exec, 1
    s_add_u32 s43, s{sEPOCH}, 1
    v_mov_b32 v16, s43
    v_mov_b32 v17, {WS_EPOCH}
    global_store_dword v17, v16, s[{sWS}:{sWS+1}]
    L_fin_end:
    s_mov_b64 exec, -1""")
    g.ts(13)
    g.endwave()

    if opt.get("ts"):
        g(f"""
        L_dump:
        s_waitcnt vmcnt(0) lgkmcnt(0)""")
        g.ts(14)
        g(f"""
        s_getreg_b32 s{sTS+30}, hwreg(HW_REG_XCC_ID)
        s_lshl_b32 s43, s2, 4
        s_add_u32 s43, s43, s{sWAVE}
        s_lshl_b32 s43, s43, 6""")
        g.base(60, sWS, WS_TS, 43)
        g("s_mov_b64 exec, 1\nv_mov_b32 v1, 0")
        for k in range(16):
            g(f"v_mov_b32 v16, s{sTS+2*k}\nglobal_store_dword v1, v16, s[60:61] offset:{4*k}")
    g("L_exit:\ns_endpgm\nL_code_end:")

    ref = open(f"cdna_kernels/{NAME}.s.ref").read().split("\n")
    head = []
    for line in ref:
        if line.startswith("; @launch"):
            head.append(f"; @launch grid=(256,1,1) block=(576,1,1) lds={LDS_SIZE}")
            break
        head.append(line)
    out = "\n".join(head) + f"""
.amdgcn_target "amdgcn-amd-amdhsa--gfx950"
.text
.globl {KN}
.p2align 8
.type {KN},@function
{KN}:
""" + "\n".join(g.L) + f"""
.section .rodata,"a"
.p2align 6
.amdhsa_kernel {KN}
  .amdhsa_next_free_vgpr 168
  .amdhsa_next_free_sgpr 102
  .amdhsa_accum_offset 168
  .amdhsa_group_segment_fixed_size 0
  .amdhsa_kernarg_size 104
  .amdhsa_user_sgpr_count 2
  .amdhsa_user_sgpr_kernarg_segment_ptr 1
  .amdhsa_system_sgpr_workgroup_id_x 1
.end_amdhsa_kernel
"""
    return out


if __name__ == "__main__":
    out = sys.argv[1]
    opt = {}
    for a in sys.argv[2:]:
        k, v = a.split("=", 1)
        if k == "W":
            v = [int(c, 16) for c in v]
            v = (v * 8)[:8]
        elif v.lstrip("-").isdigit():
            v = int(v)
        opt[k] = v
    open(out, "w").write(gen(opt))
```

```python
import struct
import sys

NAME = "sequential_preLN__gqa_block_cached__dense_activation_squared_relu__decode"
KN = NAME + "_kernel"


def f32(x):
    return "0x%08x" % struct.unpack("<I", struct.pack("<f", x))[0]


PAIR = 1056
TILE = 8 * PAIR
SLOT = 4 * TILE
NSLOT = 4
RING_END = NSLOT * SLOT
PBUF = RING_END
WQS = RING_END
XN = WQS + 16384
QL = XN + 1792
HB = QL + 1024
FB = HB + 1792
RED = FB + 256
FLAGS = RED + 1024
LANDED = FLAGS
CONSUMED = FLAGS + 16
STAGE = FLAGS + 32
QRDY = FLAGS + 48
WRDY = FLAGS + 52
LAM = FLAGS + 128
WT = FLAGS + 144
EPL = FLAGS + 56
STATM = FLAGS + 64
STATL = FLAGS + 96
LDS_SIZE = FLAGS + 256
W2KS = 32 * 928 + 512
W2L = 57344

WS_EPOCH = 0
WS_ML = 0x10000
WS_OP = 0x20000
WS_A1 = 0x60000
WS_Y2 = 0x70000
WS_QP = 0x90000
WS_PG = 0xd0000
WS_GX = 0xe0000
WS_TS = 0x100000

TAGC = 0x9E3779B9
SPIN = 1 << 20

sX, sK, sV, sWQ, sWO, sW1, sB1 = 4, 6, 8, 10, 12, 16, 18
sW2, sB2, sOUT, sDBG, sWS = 20, 22, 24, 26, 28
sWAVE = 3
sKVH, sJ, sB, sSPLIT, sGRP, sREG, sU = 30, 31, 36, 37, 38, 39, 50
sSRD = 32
sEPOCH, sTAG, sTO = 51, 52, 53
sSGRP, sSSPL = 14, 15
sTS = 64


class Gen:
    def __init__(self, opt):
        self.L = []
        self.opt = opt
        self.uid = 0

    def __call__(self, s):
        for line in s.split("\n"):
            line = line.strip()
            if line:
                self.L.append(line if line.endswith(":") else "    " + line)

    def lab(self, base):
        self.uid += 1
        return f"L_{base}_{self.uid}"

    def ts(self, k):
        if self.opt.get("ts") == 1 or (self.opt.get("ts") == 2 and (k <= 6 or k == 14)):
            self(f"s_waitcnt lgkmcnt(0)\ns_memrealtime s[{sTS+2*k}:{sTS+2*k+1}]\ns_waitcnt lgkmcnt(0)")

    def ts_init(self):
        if self.opt.get("ts"):
            for k in range(16):
                self(f"s_mov_b64 s[{sTS+2*k}:{sTS+2*k+1}], 0")

    def endwave(self):
        if self.opt.get("ts"):
            self("s_branch L_dump")
        else:
            self("s_endpgm")

    def srd(self, ptr, size, off=None):
        if off is None:
            self(f"s_mov_b32 s{sSRD}, s{ptr}\ns_and_b32 s{sSRD+1}, s{ptr+1}, 0xffff")
        else:
            self(f"s_add_u32 s{sSRD}, s{ptr}, s{off}\ns_addc_u32 s{sSRD+1}, s{ptr+1}, 0\ns_and_b32 s{sSRD+1}, s{sSRD+1}, 0xffff")
        self(f"s_mov_b32 s{sSRD+2}, {size}\ns_mov_b32 s{sSRD+3}, 0x20000")

    def base(self, dst, ptr, const=0, off=None):
        self(f"s_add_u32 s{dst}, s{ptr}, {const}\ns_addc_u32 s{dst+1}, s{ptr+1}, 0")
        if off is not None:
            self(f"s_add_u32 s{dst}, s{dst}, s{off}\ns_addc_u32 s{dst+1}, s{dst+1}, 0")

    def mask(self, dst, pat16):
        v = pat16 | (pat16 << 16)
        self(f"s_mov_b32 s{dst}, 0x{v:08x}\ns_mov_b32 s{dst+1}, 0x{v:08x}")

    def lds_wait4(self, vzero, off, target, sseen, vt, sleep=1):
        top, done = self.lab("w4"), self.lab("w4d")
        self(f"""
        s_cmp_ge_u32 s{sseen}, {target}
        s_cbranch_scc1 {done}
        {top}:
        ds_read_b128 v[{vt}:{vt+3}], v{vzero} offset:{off - FLAGS}
        s_waitcnt lgkmcnt(0)
        v_min3_u32 v{vt}, v{vt}, v{vt+1}, v{vt+2}
        v_min_u32 v{vt}, v{vt}, v{vt+3}
        s_nop 0
        v_readfirstlane_b32 s{sseen}, v{vt}
        s_cmp_ge_u32 s{sseen}, {target}
        s_cbranch_scc1 {done}
        s_sleep {sleep}
        s_sub_u32 s{sTO}, s{sTO}, 1
        s_cbranch_scc0 {top}
        s_mov_b32 s{sTO}, 0
        {done}:""")

    def lds_wait1(self, vaddr, off, target, sseen, vt, sleep=1):
        top, done = self.lab("w1"), self.lab("w1d")
        self(f"""
        s_cmp_ge_u32 s{sseen}, {target}
        s_cbranch_scc1 {done}
        {top}:
        ds_read_b32 v{vt}, v{vaddr} offset:{off - FLAGS}
        s_waitcnt lgkmcnt(0)
        v_readfirstlane_b32 s{sseen}, v{vt}
        s_cmp_ge_u32 s{sseen}, {target}
        s_cbranch_scc1 {done}
        s_sleep {sleep}
        s_sub_u32 s{sTO}, s{sTO}, 1
        s_cbranch_scc0 {top}
        s_mov_b32 s{sTO}, 0
        {done}:""")

    def poll_tail(self, top, done, sleep):
        self(f"""
        s_cmp_eq_u64 vcc, 0
        s_cbranch_scc1 {done}
        s_mov_b64 exec, vcc
        s_sleep {sleep}
        s_sub_u32 s{sTO}, s{sTO}, 1
        s_cbranch_scc0 {top}
        s_mov_b32 s{sTO}, 0
        {done}:
        s_mov_b64 exec, -1""")

    def maxu_chain(self, dst, regs):
        regs = list(regs)
        first = True
        while regs:
            if first:
                a = regs[:3]; regs = regs[3:]
                if len(a) == 3:
                    self(f"v_max3_u32 v{dst}, v{a[0]}, v{a[1]}, v{a[2]}")
                else:
                    self(f"v_max_u32 v{dst}, v{a[0]}, v{a[1]}")
                first = False
            else:
                a = regs[:2]; regs = regs[2:]
                if len(a) == 2:
                    self(f"v_max3_u32 v{dst}, v{dst}, v{a[0]}, v{a[1]}")
                else:
                    self(f"v_max_u32 v{dst}, v{dst}, v{a[0]}")

    def xlane(self, op, v, vt, rors, s16, s32):
        for r in rors:
            self(f"s_nop 1\n{op}_dpp v{v}, v{v}, v{v} row_ror:{r} row_mask:0xf bank_mask:0xf")
        if s16:
            self(f"v_mov_b32 v{vt}, v{v}\ns_nop 1\nv_permlane16_swap_b32 v{v}, v{vt}\ns_nop 1\n{op} v{v}, v{v}, v{vt}")
        if s32:
            self(f"v_mov_b32 v{vt}, v{v}\ns_nop 1\nv_permlane32_swap_b32 v{v}, v{vt}\ns_nop 1\n{op} v{v}, v{v}, v{vt}")

    def rbf(self, v):
        self(f"v_cvt_pk_bf16_f32 v{v}, v{v}, v{v}\nv_and_b32 v{v}, 0xffff0000, v{v}")

    def ln_stats(self, vp, vx, vmu, vrs, vt):
        for j in range(7):
            self(f"v_lshlrev_b32 v{vx+2*j}, 16, v{vp+j}\nv_and_b32 v{vx+2*j+1}, 0xffff0000, v{vp+j}")
        self(f"v_add_f32 v{vmu}, v{vx}, v{vx+1}\nv_add_f32 v{vt}, v{vx+2}, v{vx+3}")
        for j in range(4, 14, 2):
            self(f"v_add_f32 v{vmu}, v{vmu}, v{vx+j}\nv_add_f32 v{vt}, v{vt}, v{vx+j+1}")
        self(f"v_add_f32 v{vmu}, v{vmu}, v{vt}")
        self.xlane("v_add_f32", vmu, vt, [1, 2, 4, 8], True, False)
        self(f"v_mul_f32 v{vmu}, {f32(1.0/448)}, v{vmu}")
        self(f"v_sub_f32 v{vt}, v{vx}, v{vmu}\nv_mul_f32 v{vrs}, v{vt}, v{vt}")
        for j in range(1, 14):
            self(f"v_sub_f32 v{vt}, v{vx+j}, v{vmu}\nv_fmac_f32 v{vrs}, v{vt}, v{vt}")
        self.xlane("v_add_f32", vrs, vt, [1, 2, 4, 8], True, False)
        self(f"v_mul_f32 v{vrs}, {f32(1.0/448)}, v{vrs}")
        self.rbf(vrs)
        self(f"v_add_f32 v{vrs}, {f32(1e-5)}, v{vrs}")
        self.rbf(vrs)
        self(f"v_sqrt_f32 v{vrs}, v{vrs}")
        self.rbf(vmu)
        self.rbf(vrs)
        self(f"v_rcp_f32 v{vrs}, v{vrs}\ns_nop 0")

    def ln_apply(self, va, vb, vmu, vrs, vout):
        self(f"""
        v_sub_f32 v{va}, v{va}, v{vmu}
        v_sub_f32 v{vb}, v{vb}, v{vmu}
        v_cvt_pk_bf16_f32 v{vout}, v{va}, v{vb}
        v_lshlrev_b32 v{va}, 16, v{vout}
        v_and_b32 v{vb}, 0xffff0000, v{vout}
        v_mul_f32 v{va}, v{va}, v{vrs}
        v_mul_f32 v{vb}, v{vb}, v{vrs}
        v_cvt_pk_bf16_f32 v{vout}, v{va}, v{vb}""")

    def select4(self, dst, acc, m):
        for r in range(4):
            self(f"v_cndmask_b32 v{dst+r}, v{acc+r}, v{acc+4+r}, s[{m}:{m+1}]")
        for r in range(4):
            self(f"v_cndmask_b32 v{dst+r}, v{dst+r}, v{acc+8+r}, s[{m+2}:{m+3}]")
        for r in range(4):
            self(f"v_cndmask_b32 v{dst+r}, v{dst+r}, v{acc+12+r}, s[{m+4}:{m+5}]")

    def codes(self, dst, n, vi):
        self(f"""
        s_lshr_b32 s43, s{sEPOCH}, 3
        s_mul_i32 s43, s43, 0x9e3779b1
        s_add_u32 s43, s43, 0x7f4a7c15
        v_lshrrev_b32 v{dst}, v{vi}, s43""")
        for r in range(1, n):
            self(f"v_lshrrev_b32 v{dst+r}, {2*r}, v{dst}")
        for r in range(n):
            self(f"v_add_u32 v{dst+r}, s{sEPOCH}, v{dst+r}")
        for r in range(n):
            self(f"v_and_b32 v{dst+r}, 7, v{dst+r}")

    def multipoll(self, loads, codes, vx, vt, sleep, trace=False, after_issue=None, shadow=None, smask=None):
        top, done = self.lab("mp"), self.lab("mpd")

        def issue(ins, lo):
            self(f"s_mov_b32 exec_hi, 0\n{ins}\ns_mov_b32 exec_hi, -1" if lo else ins)
        if self.opt.get("ts") == 1 and trace:
            self(f"s_mov_b32 s{sTS+2}, 0\ns_mov_b32 s{sTS+6}, 0\ns_mov_b32 s{sTS+8}, 0\ns_mov_b32 s{sTS+12}, 0")
            self(f"s_memrealtime s[{sTS+10}:{sTS+11}]\ns_waitcnt lgkmcnt(0)")
        for ins, regs, lo in loads:
            issue(ins, lo)
        if after_issue:
            after_issue()
        self(f"{top}:\ns_waitcnt vmcnt(0)")
        if self.opt.get("ts") == 1 and trace:
            self(f"s_mov_b32 s{sTS+2}, s{sTS+6}\ns_mov_b32 s{sTS+6}, s{sTS+8}\ns_add_u32 s{sTS+12}, s{sTS+12}, 1")
            self.ts(4)
        xs = []
        for ins, regs, lo in loads:
            for r, c in zip(regs, codes):
                self(f"v_xor_b32 v{vx+len(xs)}, v{r}, v{c}")
                xs.append(vx + len(xs))
        self(f"v_or3_b32 v{vt}, v{xs[0]}, v{xs[1]}, v{xs[2]}")
        for i in range(3, len(xs) - 1, 2):
            self(f"v_or3_b32 v{vt}, v{vt}, v{xs[i]}, v{xs[i+1]}")
        self(f"v_bitop3_b32 v{vt}, v{vt}, v{xs[-1]}, 7 bitop3:0xa8\nv_cmp_ne_u32 vcc, 0, v{vt}")
        if shadow:
            shadow()
        self(f"s_cmp_eq_u64 vcc, 0\ns_cbranch_scc1 {done}")
        if sleep:
            self(f"s_sleep {sleep}")
        for k, (ins, regs, lo) in enumerate(loads):
            self(f"v_xor_b32 v{vt}, v{regs[0]}, v{codes[0]}")
            for r, c in list(zip(regs, codes))[1:]:
                self(f"v_bitop3_b32 v{vt}, v{vt}, v{r}, v{c} bitop3:0xf6")
            self(f"v_and_b32 v{vt}, 7, v{vt}\nv_cmp_ne_u32 s[{smask[k]}:{smask[k]+1}], 0, v{vt}")
        for k, (ins, regs, lo) in enumerate(loads):
            sk = self.lab("mps")
            self(f"s_cmp_eq_u64 s[{smask[k]}:{smask[k]+1}], 0\ns_cbranch_scc1 {sk}")
            issue(ins, lo)
            self(f"{sk}:")
        self(f"""
        s_sub_u32 s{sTO}, s{sTO}, 1
        s_cbranch_scc0 {top}
        s_mov_b32 s{sTO}, 0
        {done}:""")

    def prefetch_code(self, vt):
        pc = self.lab("pc")
        self(f"""
        s_getpc_b64 s[62:63]
        {pc}:
        s_sub_u32 s62, s62, {pc}-{KN}
        s_subb_u32 s63, s63, 0
        v_lshlrev_b32 v{vt}, 7, v0
        v_min_u32 v{vt+1}, L_code_end-{KN}-4, v{vt}
        global_load_dword v166, v{vt+1}, s[62:63] {self.opt.get('ppol', '')}
        v_add_u32 v{vt}, 8192, v{vt}
        v_min_u32 v{vt+1}, L_code_end-{KN}-4, v{vt}
        global_load_dword v167, v{vt+1}, s[62:63] {self.opt.get('ppol', '')}
        v_add_u32 v{vt}, 8192, v{vt}
        v_min_u32 v{vt+1}, L_code_end-{KN}-4, v{vt}
        global_load_dword v165, v{vt+1}, s[62:63] {self.opt.get('ppol', '')}""")


def gen(opt):
    g = Gen(opt)
    WMIN, WMAX = opt.get("wmin", 3), opt.get("wmax", 7)
    LAM0 = opt.get("lam", 11)
    LAMMAX = 8 * (WMAX - WMIN)
    wpol = opt.get("wpol", "nt")
    qpol = opt.get("qpol", "nt")
    xpol = opt.get("xpol", "")
    ppol = opt.get("ppol", "")
    vF = 2

    clr = opt.get("clr", 2)

    def clears():
        g("v_mov_b32 v12, -1\nv_mov_b32 v13, -1\nv_mov_b32 v14, -1\nv_mov_b32 v15, -1")
        g(f"s_lshl_b32 s43, s{sREG}, 10")
        g.base(54, sWS, WS_OP, 43)
        g("global_store_dwordx4 v1, v[12:15], s[54:55] sc1\nL_clr_done:")

    g(f"""
    s_cmp_ge_u32 s2, 256
    s_cbranch_scc1 L_exit
    s_load_dwordx16 s[4:19], s[0:1], 0
    s_load_dwordx8 s[20:27], s[0:1], 64
    s_load_dwordx2 s[28:29], s[0:1], 96""")
    pc = g.lab("pc")
    g(f"""
    s_getpc_b64 s[62:63]
    {pc}:
    s_sub_u32 s62, s62, {pc}-{KN}
    s_subb_u32 s63, s63, 0
    v_lshlrev_b32 v1, 5, v0
    v_min_u32 v1, L_code_end-{KN}-4, v1
    global_load_dword v167, v1, s[62:63] {ppol}""")
    g.ts_init()
    if opt.get("ts"):
        g(f"s_memrealtime s[{sTS}:{sTS+1}]")
    g(f"""
    v_lshrrev_b32 v1, 6, v0
    v_and_b32 v0, 63, v0
    v_readfirstlane_b32 s{sWAVE}, v1
    v_mov_b32 v{vF}, {FLAGS}
    v_lshl_add_u32 v3, v0, 2, v{vF}
    v_mov_b32 v4, 0
    ds_write_b32 v3, v4
    s_and_b32 s{sKVH}, s2, 7
    s_lshr_b32 s{sJ}, s2, 3
    s_lshr_b32 s{sB}, s{sJ}, 4
    s_and_b32 s{sSPLIT}, s{sJ}, 15
    s_lshl_b32 s{sGRP}, s{sB}, 3
    s_add_u32 s{sGRP}, s{sGRP}, s{sKVH}
    s_mov_b32 s{sREG}, s2
    s_lshl_b32 s{sU}, s{sGRP}, 1
    s_add_u32 s{sU}, s{sU}, s{sSPLIT}
    s_sub_u32 s{sU}, s{sU}, 14
    s_mov_b32 s{sTO}, {SPIN}
    v_lshlrev_b32 v1, 4, v0
    s_lshl_b32 s44, s{sREG}, 20
    s_waitcnt lgkmcnt(0)
    s_barrier
    s_lshr_b32 s{sSGRP}, s{sREG}, 4
    s_and_b32 s{sSSPL}, s{sREG}, 15
    s_cmp_ge_u32 s{sWAVE}, 4
    s_cbranch_scc1 L_notloader""")

    g("s_setprio 3")
    g.ts(3)
    g.srd(sK, 1 << 20, 44)
    g(f"""
    s_mov_b32 s40, 0
    s_lshl_b32 s41, s{sWAVE}, 13
    s_mul_i32 s47, s{sWAVE}, {TILE}
    s_mov_b32 s46, 0
    s_mov_b32 s45, 0
    s_mov_b32 s49, {opt.get("lamst", LAM0)}
    s_mov_b32 s55, 0
    s_lshl_b32 s43, s{sWAVE}, 2
    v_add_u32 v3, s43, v{vF}
    L_row:
    s_add_u32 s42, s46, s47""")
    PH = [0, 4, 2, 6, 1, 5, 3, 7]
    for j in range(8):
        go = g.lab("go")
        g(f"""
        s_add_u32 m0, s42, {j*PAIR}
        s_add_u32 s43, s41, {j*1024}
        s_sub_u32 s54, s55, {WMAX - j}
        s_waitcnt vmcnt({WMAX})""")
        for w in range(WMAX - 1, WMIN - 1, -1):
            g(f"""
            s_cmp_ge_u32 s49, {8*(w+1-WMIN) - PH[j]}
            s_cbranch_scc1 {go}
            s_add_u32 s54, s54, 1
            s_waitcnt vmcnt({w})""")
        g(f"""
        {go}:
        buffer_load_dwordx4 v1, s[{sSRD}:{sSRD+3}], s43 offen nt lds
        s_max_i32 s54, s54, 0
        v_mov_b32 v4, s54
        ds_write_b32 v3, v4 offset:{LANDED-FLAGS}""")
        if j == 6:
            g(f"ds_read_b128 v[8:11], v{vF} offset:{CONSUMED-FLAGS}\nds_read_b32 v12, v3 offset:{LAM-FLAGS}")
    g(f"""
    s_add_u32 s40, s40, 1
    s_add_u32 s55, s55, 8
    s_add_u32 s41, s41, 32768
    s_add_u32 s46, s46, {SLOT}
    s_cmp_eq_u32 s46, {RING_END}
    s_cselect_b32 s46, 0, s46
    s_waitcnt lgkmcnt(1)
    v_min3_u32 v8, v8, v9, v10
    v_min_u32 v8, v8, v11
    v_readfirstlane_b32 s49, v12
    v_readfirstlane_b32 s45, v8
    s_sub_u32 s48, s40, {NSLOT-1}
    s_max_i32 s48, s48, 0
    s_add_u32 s49, s49, {LAM0}""")
    if opt.get("xb"):
        g(f"""
        s_cmp_ge_u32 s40, {opt["xb"]}
        s_cselect_b32 s43, {opt.get("lamb", LAMMAX)}, 0
        s_max_u32 s49, s49, s43""")
    if opt.get("xs"):
        g(f"""
        s_cmp_lt_u32 s40, {opt["xs"]}
        s_cselect_b32 s49, {opt.get("lamst", LAM0)}, s49""")
    g.lds_wait4(vF, CONSUMED, "s48", 45, 8)
    if opt.get("ts"):
        for rr, kk in ((1, 4), (8, 5)):
            lb = g.lab("tsk")
            g(f"s_cmp_eq_u32 s40, {rr}\ns_cbranch_scc0 {lb}")
            g.ts(kk)
            g(f"{lb}:")
    g(f"""
    s_cmp_eq_u32 s40, 32
    s_cbranch_scc0 L_row_nosw""")
    g.ts(1)
    g.srd(sV, 1 << 20, 44)
    g(f"""
    s_lshl_b32 s41, s{sWAVE}, 13
    L_row_nosw:
    s_cmp_lt_u32 s40, 64
    s_cbranch_scc1 L_row""")
    wd = opt.get("wd", 1)
    g(f"""
    v_mov_b32 v4, 512
    s_cmp_lt_u32 s{sSPLIT}, 14
    s_cbranch_scc0 L_ld_not_t1""")
    g.srd(sWO, 4096 * 896)
    g(f"""
    v_lshrrev_b32 v5, 2, v0
    v_mul_u32_u24 v5, 896, v5
    v_and_b32 v6, 3, v0
    v_lshl_add_u32 v5, v6, 4, v5
    s_lshl_b32 s41, s{sKVH}, 2
    s_add_u32 s41, s41, s{sWAVE}
    s_mul_i32 s41, s41, {128*896}
    s_lshl_b32 s43, s{sSPLIT}, 6
    s_add_u32 s41, s41, s43
    s_lshl_b32 s42, s{sWAVE}, 13
    s_waitcnt vmcnt({opt.get("wv", 3)})""")
    if opt.get("wv", 3) == 0:
        g(f"ds_write_b32 v3, v4 offset:{LANDED-FLAGS}")
        g.ts(2)
    if wd == 2:
        g.lds_wait4(vF, CONSUMED, 65, 45, 8, sleep=0)
    for j in range(8):
        g(f"""
        s_add_u32 m0, s42, {j*1024}
        s_add_u32 s43, s41, {j*16*896}
        buffer_load_dwordx4 v5, s[{sSRD}:{sSRD+3}], s43 offen {wpol} lds""")
    if opt.get("wv", 3) != 0:
        g(f"s_waitcnt vmcnt(8)\nds_write_b32 v3, v4 offset:{LANDED-FLAGS}")
        g.ts(2)
    g(f"""
    s_branch L_t1
    L_ld_not_t1:
    s_cmp_lt_u32 s{sU}, 28
    s_cbranch_scc1 L_ld_t2
    s_waitcnt vmcnt(0)
    ds_write_b32 v3, v4 offset:{LANDED-FLAGS}""")
    g.ts(2)
    g.endwave()
    g("L_ld_t2:")
    g.srd(sW1, 448 * 3584)
    g(f"""
    v_and_b32 v6, 7, v0
    v_lshlrev_b32 v6, 4, v6
    v_and_b32 v7, 16, v0
    v_lshlrev_b32 v7, 1, v7
    v_xor_b32 v6, v6, v7
    s_and_b32 s43, s{sWAVE}, 1
    s_lshl_b32 s43, s43, 6
    v_xor_b32 v6, s43, v6
    v_xor_b32 v7, 64, v6
    v_lshrrev_b32 v5, 3, v0
    v_mul_u32_u24 v5, 3584, v5
    v_add_u32 v6, v6, v5
    v_add_u32 v7, v7, v5
    s_mul_i32 s41, s{sWAVE}, {7*8*3584}
    s_lshl_b32 s43, s{sU}, 7
    s_add_u32 s41, s41, s43
    s_mul_i32 s42, s{sWAVE}, {7*1024}
    s_waitcnt vmcnt({opt.get("wv2", 4)})""")
    for row in range(2):
        if row:
            g.lds_wait4(vF, CONSUMED, opt.get("w1c", 65), 45, 8, sleep=0)
        for j in range(7):
            idx = row * 28 + j
            g(f"""
            s_add_u32 m0, s42, {idx*1024}
            s_add_u32 s43, s41, {idx*8*3584}
            buffer_load_dwordx4 v{6 + (j & 1)}, s[{sSRD}:{sSRD+3}], s43 offen {wpol} lds""")
        if row == 0:
            g(f"s_waitcnt vmcnt(7)\nds_write_b32 v3, v4 offset:{LANDED-FLAGS}")
            g.ts(2)
    g.srd(sW2, 1792 * 896)
    g(f"""
    s_lshl_b32 s41, s{sU}, 3
    s_add_u32 s41, s41, s{sWAVE}
    s_mul_i32 s41, s41, {8*896}
    s_mul_i32 s42, s{sWAVE}, {8*928 + 128}""")
    for row in range(2):
        g.lds_wait4(vF, CONSUMED, 63 + row, 45, 8)
        g("s_mov_b32 exec_hi, 0x00ffffff")
        for j in range(8):
            g(f"""
            s_add_u32 m0, s42, {W2L + row*W2KS + j*928}
            s_add_u32 s43, s41, {(row*32 + j)*896}
            buffer_load_dwordx4 v1, s[{sSRD}:{sSRD+3}], s43 offen {wpol} lds""")
        g("s_mov_b32 exec_hi, -1")
    g("s_branch L_t2")

    g(f"""
    L_notloader:
    v_lshrrev_b32 v5, 4, v0
    v_and_b32 v6, 1, v0
    s_cmp_lt_u32 s{sWAVE}, 8
    s_cbranch_scc1 L_consumer
    s_load_dword s{sEPOCH}, s[{sWS}:{sWS+1}], {WS_EPOCH}
    s_setprio 2
    v_lshrrev_b32 v7, 5, v0
    v_mul_u32_u24 v7, 896, v7
    v_and_b32 v8, 31, v0
    v_lshl_add_u32 v7, v8, 2, v7""")
    for j in range(7):
        g(f"global_load_dword v{16+j}, v7, s[{sX}:{sX+1}] offset:{128*j} {xpol}")
    g.srd(sWQ, 448 * 8192)
    g(f"""
    v_lshrrev_b32 v9, 2, v0
    v_lshlrev_b32 v9, 13, v9
    v_and_b32 v10, 3, v0
    v_lshl_add_u32 v9, v10, 4, v9
    s_and_b32 s47, s{sJ}, 1
    s_lshr_b32 s46, s{sJ}, 2
    s_lshl_b32 s46, s46, 3
    s_add_u32 s46, s46, s{sKVH}
    s_lshl_b32 s46, s46, 1
    s_bitcmp1_b32 s{sJ}, 1
    s_addc_u32 s46, s46, 0
    s_mul_i32 s41, s47, {224 * 8192}
    s_lshl_b32 s43, s46, 6
    s_add_u32 s41, s41, s43""")
    for j in range(14):
        g(f"""
        s_mov_b32 m0, {WQS + j*1024}
        s_add_u32 s43, s41, {j*16*8192}
        buffer_load_dwordx4 v9, s[{sSRD}:{sSRD+3}], s43 offen {qpol} lds""")
    g("s_waitcnt vmcnt(14)")
    g.ts(1)
    g.ln_stats(16, 24, 10, 11, 12)
    g(f"v_add_u32 v7, {XN}, v7")
    for j in range(7):
        g.ln_apply(24 + 2*j, 25 + 2*j, 10, 11, 16 + j)
        g(f"ds_write_b32 v7, v{16+j} offset:{128*j}")
    vXF, vWF, vQA = 40, 68, 124
    g(f"""
    v_mul_u32_u24 v8, 896, v6
    v_lshl_add_u32 v8, v5, 4, v8
    s_mul_i32 s43, s47, 448
    s_add_u32 s43, s43, {XN}
    v_add_u32 v8, s43, v8
    v_bfe_u32 v9, v0, 2, 2
    v_lshl_add_u32 v9, v5, 3, v9
    v_lshlrev_b32 v9, 6, v9
    v_and_b32 v10, 3, v0
    v_lshl_add_u32 v9, v10, 3, v9
    v_add_u32 v9, {WQS}, v9""")
    for st in range(7):
        g(f"ds_read_b128 v[{vXF+4*st}:{vXF+4*st+3}], v8 offset:{64*st}")
    g("s_waitcnt vmcnt(0)")
    g.ts(2)
    for st in range(7):
        for nt in range(2):
            a = vWF + 8*st + 4*nt
            g(f"ds_read_b64_tr_b16 v[{a}:{a+1}], v9 offset:{2048*st + 32*nt}")
            g(f"ds_read_b64_tr_b16 v[{a+2}:{a+3}], v9 offset:{2048*st + 32*nt + 256}")
    g.mask(54, 0xcccc)
    g(f"""
    s_lshl_b32 s43, s47, 14
    s_lshl_b32 s41, s46, 7
    s_add_u32 s43, s43, s41""")
    g.base(60, sWS, WS_QP, 43)
    g(f"""
    v_bfe_u32 v10, v0, 1, 1
    v_lshlrev_b32 v10, 6, v10
    v_lshl_add_u32 v10, v6, 15, v10
    v_lshl_add_u32 v10, v5, 4, v10
    v_lshlrev_b32 v11, 3, v5
    s_waitcnt lgkmcnt(0)
    s_add_u32 s{sTAG}, s{sEPOCH}, 0x{TAGC:08x}""")
    for st in range(7):
        for nt in range(2):
            a = vWF + 8*st + 4*nt
            d = vQA + 4*nt
            c = "0" if st == 0 else f"v[{d}:{d+3}]"
            g(f"v_mfma_f32_16x16x32_bf16 v[{d}:{d+3}], v[{a}:{a+3}], v[{vXF+4*st}:{vXF+4*st+3}], {c}")
    g.codes(12, 4, 11)
    for r in range(4):
        g(f"v_cndmask_b32 v{16+r}, v{vQA+r}, v{vQA+4+r}, s[54:55]")
    for r in range(4):
        g(f"v_bfi_b32 v{16+r}, 7, v{12+r}, v{16+r}")
    g(f"""
    s_mov_b32 exec_lo, 0x000f000f
    s_mov_b32 exec_hi, 0x000f000f
    global_store_dwordx4 v10, v[16:19], s[60:61] sc1
    s_mov_b64 exec, -1
    v_mov_b32 v4, s{sEPOCH}
    ds_write_b32 v{vF}, v4 offset:{EPL-FLAGS}""")
    g.ts(3)
    g(f"""
    s_lshr_b32 s43, s{sSGRP}, 3
    s_lshl_b32 s43, s43, 15
    s_and_b32 s41, s{sSGRP}, 7
    s_lshl_b32 s41, s41, 11
    s_add_u32 s43, s43, s41""")
    g.base(60, sWS, WS_QP, 43)
    g.base(56, sWS, WS_QP + 16384, 43)
    g("v_and_b32 v11, 3, v0\nv_lshlrev_b32 v11, 3, v11")
    g.codes(12, 4, 11)
    g("s_mov_b32 s45, 0")
    g.lds_wait4(vF, LANDED, opt.get("qd", 24), 45, 24, sleep=2)
    g.multipoll([(f"global_load_dwordx4 v[{40+4*k}:{43+4*k}], v1, s[{60 if k < 2 else 56}:{61 if k < 2 else 57}] offset:{1024*(k&1)} sc1",
                  list(range(40+4*k, 44+4*k)), False) for k in range(4)], [12, 13, 14, 15], 20, 36, opt.get("qsl", 16), smask=[32, 34, 96, 98])
    for r in range(8):
        g(f"v_add_f32 v{20+r}, v{20+r}, v{28+r}")
    g(f"""
    v_cvt_pk_bf16_f32 v20, v20, v21
    v_cvt_pk_bf16_f32 v21, v22, v23
    v_cvt_pk_bf16_f32 v24, v24, v25
    v_cvt_pk_bf16_f32 v25, v26, v27
    v_lshlrev_b32 v8, 3, v0
    v_add_u32 v8, {QL}, v8
    v_mov_b32 v4, 1
    ds_write_b64 v8, v[20:21]
    ds_write_b64 v8, v[24:25] offset:512
    ds_write_b32 v{vF}, v4 offset:{QRDY-FLAGS}
    s_setprio 0""")
    g.ts(4)
    if clr == 1:
        clears()
    ctl = opt.get("ctl", 4)
    R0, RSTEP, NR = opt.get("r0", 12), opt.get("rstep", 4), opt.get("nr", 12)
    g(f"""
    v_and_b32 v22, 3, v0
    v_lshl_add_u32 v22, v22, 2, v{vF}
    s_lshl_b32 s54, s{sTAG}, 12
    s_mov_b32 s45, 0
    s_mov_b32 s46, 0
    s_mov_b32 s40, 0
    s_cmp_lt_u32 s{sU}, 28
    s_cselect_b32 s55, {opt.get("lead", 2)}, 0
    s_cmp_lt_u32 s{sSPLIT}, 14
    s_cselect_b32 s55, 0, s55
    s_lshl_b32 s47, s55, 2
    s_getreg_b32 s43, hwreg(HW_REG_XCC_ID)
    s_lshl_b32 s49, s43, 31
    s_xor_b32 s49, s49, {f32(opt.get("par", 30) / 100.0)}
    s_and_b32 s43, s43, 15
    s_lshl_b32 s43, s43, 10""")
    g.base(60, sWS, WS_PG, 43)
    g(f"""
    s_and_b32 s43, s2, 7
    s_lshl_b32 s43, s43, 5
    s_lshr_b32 s41, s2, 3
    s_add_u32 s41, s41, s43
    s_lshl_b32 s41, s41, 2
    v_mov_b32 v20, s41
    s_lshl_b32 s43, s43, 2
    v_lshl_add_u32 v21, v0, 2, s43
    s_add_u32 s43, s43, 0x4000
    v_mov_b32 v23, s43
    s_mov_b32 exec_lo, 0
    v_mov_b32 v21, s43
    s_mov_b32 exec_lo, -1
    s_mul_i32 s58, s{sJ}, {RSTEP * 32}
    s_add_u32 s58, s58, {R0 * 32}
    s_cmp_eq_u32 s{sKVH}, 0
    s_cselect_b32 s43, 0, {opt.get("mar", 48)}
    s_sub_u32 s58, s58, s43
    s_cmp_lt_u32 s{sJ}, {NR}
    s_cselect_b32 s58, s58, 0x7fffffff
    s_sub_u32 s59, 0, s47
    s_add_u32 s48, s{sJ}, 7
    s_and_b32 s48, s48, 7
    s_lshl_b32 s48, s48, 6
    s_add_u32 s48, s48, {42 * 32}""")
    kg = opt.get("kg", 60) / 100.0

    def control(end, apply=True):
        top, go, done, norep, nopub = g.lab("ctl"), g.lab("ctlgo"), g.lab("ctldone"), g.lab("ctlnr"), g.lab("ctlnp")
        kp = opt.get("kp", 100) / 100.0
        g(f"""
        {top}:
        ds_read_b128 v[8:11], v{vF} offset:{LANDED-FLAGS}
        ds_read_b32 v12, v22 offset:{LANDED-FLAGS}
        s_waitcnt lgkmcnt(0)
        v_add3_u32 v8, v8, v9, v10
        v_add_u32 v8, v8, v11
        v_subrev_u32 v12, s55, v12
        v_readfirstlane_b32 s45, v8
        s_cmp_ge_u32 s45, {end}
        s_cbranch_scc1 {done}""")
        if kg and apply:
            l1, l2, nt = g.lab("rl1"), g.lab("rl2"), g.lab("rnt")
            g(f"""
            s_add_u32 s43, s45, s59
            s_cmp_ge_i32 s43, s58
            s_cbranch_scc0 {norep}
            s_add_u32 s41, s58, {5 * 32}
            s_mov_b32 s58, 0x7fffffff
            s_mul_i32 s43, s{sJ}, {9 * 256}""")
            g.base(56, sWS, WS_GX, 43)
            g(f"""
            s_mov_b64 exec, 1
            s_cmp_eq_u32 s{sKVH}, 0
            s_cbranch_scc0 {l1}
            v_mov_b32 v9, s{sTAG}
            v_mov_b32 v10, 2048
            global_store_dword v10, v9, s[56:57] sc1
            {l1}:
            s_load_dword s43, s[56:57], 2048 glc
            s_waitcnt lgkmcnt(0)
            ds_read_b128 v[8:11], v{vF} offset:{LANDED-FLAGS}
            s_waitcnt lgkmcnt(0)
            v_add3_u32 v8, v8, v9, v10
            v_add_u32 v8, v8, v11
            v_or_b32 v9, s54, v8
            v_readfirstlane_b32 s45, v8
            global_store_dword v20, v9, s[60:61]
            s_cmp_ge_u32 s45, s41
            s_cbranch_scc1 {nt}
            s_cmp_eq_u32 s43, s{sTAG}
            s_cbranch_scc0 {l1}
            s_add_u32 s42, s45, s59
            s_or_b32 s43, s42, s54
            v_mov_b32 v9, s43
            s_lshl_b32 s43, s{sKVH}, 8
            v_mov_b32 v10, s43
            global_store_dword v10, v9, s[56:57] sc1
            s_mov_b32 s44, 24
            {l2}:
            s_sub_u32 s44, s44, 1
            s_cbranch_scc1 {nt}""")
            for j in range(8):
                g(f"s_load_dword s{96 + j if j < 6 else 26 + j}, s[56:57], {256*j} glc")
            g("s_waitcnt lgkmcnt(0)\ns_mov_b32 s43, 0\ns_mov_b32 s41, 0")
            for j in range(8):
                r_ = 96 + j if j < 6 else 26 + j
                g(f"s_xor_b32 s{r_}, s{r_}, s54\ns_add_u32 s43, s43, s{r_}\ns_or_b32 s41, s41, s{r_}")
            g(f"""
            s_cmp_lt_u32 s41, 0x1000
            s_cbranch_scc0 {l2}
            s_lshr_b32 s43, s43, 3
            s_sub_u32 s43, s43, s42
            {f"s_add_u32 s{sTS+22}, s43, 1000" if opt.get("ts") else ""}
            s_max_i32 s43, s43, -64
            s_min_i32 s43, s43, 64
            s_add_u32 s43, s43, 2048
            s_or_b32 s43, s43, s54
            v_mov_b32 v9, s43
            global_store_dword v23, v9, s[60:61]
            {nt}:
            s_mov_b64 exec, -1
            s_branch {top}
            {norep}:""")
        g(f"""
        s_cmp_ge_u32 s45, s40
        s_cbranch_scc1 {go}
        s_sleep 2
        s_sub_u32 s{sTO}, s{sTO}, 1
        s_cbranch_scc0 {top}
        s_mov_b32 s{sTO}, 0
        s_branch {done}
        {go}:""")
        g(f"""
        s_add_u32 s40, s45, {opt.get("gper", 16)}
        v_subrev_u32 v8, s47, v8
        v_max_i32 v8, 0, v8
        v_or_b32 v9, s54, v8
        s_mov_b64 exec, 1
        global_store_dword v20, v9, s[60:61]
        s_mov_b64 exec, -1""")
        if apply and ctl:
            bias = opt.get("bias", 30) / 10.0
            g(f"""
            global_load_dword v13, v21, s[60:61] sc1
            v_cvt_f32_i32 v12, v12
            v_subrev_u32 v8, {int(bias * 4)}, v8
            s_mov_b32 exec_lo, 0
            v_mov_b32 v8, 2048
            s_mov_b32 exec_lo, -1
            s_waitcnt vmcnt(0)
            v_xor_b32 v13, s54, v13
            v_cmp_lt_u32 vcc, 0xfff, v13
            s_nop 1
            v_cndmask_b32 v13, v13, v8, vcc
            s_nop 0
            v_readlane_b32 s43, v13, 32""")
            g.xlane("v_add_u32", 13, 14, [1, 2, 4, 8], True, False)
            g(f"""
            s_sub_u32 s43, s43, 2048
            v_cvt_f32_i32 v14, s43
            v_readfirstlane_b32 s59, v13
            v_cvt_f32_u32 v13, v13
            s_lshr_b32 s59, s59, 5
            s_sub_u32 s59, s59, s45
            s_add_u32 s59, s59, {int(bias * 4)}
            v_mul_f32 v13, {f32(1 / 128.0)}, v13
            v_sub_f32 v13, v13, v12
            v_add_f32 v13, {f32(bias)}, v13
            v_mul_f32 v13, {f32(kp)}, v13
            v_fmac_f32 v13, {f32(kg / 4)}, v14
            v_add_f32 v13, s49, v13
            v_max_f32 v13, {f32(float(opt.get("lo", 0) - LAM0))}, v13
            v_min_f32 v13, {f32(float(opt.get("hi", LAMMAX) - LAM0))}, v13
            v_rndne_f32 v13, v13
            v_cvt_i32_f32 v13, v13
            s_mov_b64 exec, 15
            ds_write_b32 v22, v13 offset:{LAM-FLAGS}
            s_mov_b64 exec, -1""")
            if opt.get("ts"):
                g(f"""
                v_readfirstlane_b32 s43, v13
                s_add_u32 s{sTS+24}, s{sTS+24}, s43
                s_add_u32 s{sTS+26}, s{sTS+26}, 1""")
        g(f"s_branch {top}\n{done}:")

    control(opt.get("cst", 10) * 32, False)
    control(36 * 32)
    g.lds_wait4(vF, STAGE, 3, 46, 8)
    g(f"""
    v_lshl_add_u32 v15, v6, 4, v{vF}
    ds_read_b128 v[8:11], v15 offset:{STATM-FLAGS}
    ds_read_b128 v[24:27], v15 offset:{STATL-FLAGS}
    s_lshl_b32 s43, s{sREG}, 7""")
    g.base(56, sWS, WS_ML, 43)
    g(f"""
    v_mov_b32 v17, s{sTAG}
    v_mov_b32 v19, s{sTAG}
    s_waitcnt lgkmcnt(0)
    v_max3_f32 v16, v8, v9, v10
    v_max_f32 v16, v16, v11
    v_add_f32 v24, v24, v25
    v_add_f32 v26, v26, v27
    v_add_f32 v18, v24, v26
    s_mov_b64 exec, 3
    s_waitcnt vmcnt(0)
    global_store_dwordx4 v1, v[16:19], s[56:57] sc1
    s_mov_b64 exec, -1""")
    control("s48")
    g.base(56, sWS, WS_ML)
    top, done = g.lab("mlpoll"), g.lab("mldone")
    g(f"""
    v_and_b32 v16, 15, v0
    v_lshlrev_b32 v15, 7, v16
    v_and_b32 v17, 1, v5
    v_lshl_add_u32 v15, v17, 4, v15
    s_lshl_b32 s43, s{sSGRP}, 11
    s_lshl_b32 s41, s{sGRP}, 11
    v_mov_b32 v24, s43
    s_mov_b32 exec_lo, 0
    v_mov_b32 v24, s41
    s_mov_b32 exec_lo, -1
    v_add_u32 v15, v15, v24
    {top}:
    global_load_dwordx4 v[24:27], v15, s[56:57] sc1
    s_waitcnt vmcnt(0)
    v_xor_b32 v25, s{sTAG}, v25
    v_xor_b32 v27, s{sTAG}, v27
    v_or_b32 v25, v25, v27
    v_cmp_ne_u32 vcc, 0, v25""")
    g.poll_tail(top, done, 4)
    g(f"v_mov_b32 v25, v24")
    g.xlane("v_max_f32", 25, 27, [1, 2, 4, 8], False, False)
    g(f"""
    v_sub_f32 v24, v24, v25
    v_mul_f32 v24, {f32(1.4426950408889634/16)}, v24
    v_exp_f32 v24, v24
    s_nop 0
    v_mul_f32 v26, v24, v26""")
    g.xlane("v_add_f32", 26, 27, [1, 2, 4, 8], False, False)
    g(f"""
    v_rcp_f32 v26, v26
    v_lshl_add_u32 v17, v17, 2, v{vF}
    v_mul_f32 v24, v24, v26
    v_cmp_eq_u32 vcc, s{sSSPL}, v16
    v_mov_b32 v4, 1
    s_mov_b32 exec_lo, vcc_lo
    s_mov_b32 exec_hi, 0
    ds_write_b32 v17, v24 offset:{WT-FLAGS}
    s_mov_b64 exec, -1
    ds_write_b32 v{vF}, v4 offset:{WRDY-FLAGS}""")
    g.prefetch_code(16)
    if opt.get("tlb", 0):
        g(f"""
        s_mov_b64 exec, 0xffff
        s_cmp_lt_u32 s{sSPLIT}, 14
        s_cbranch_scc0 L_tlb2
        s_mul_i32 s43, s{sKVH}, {512*896}
        v_mul_u32_u24 v16, {32*896}, v0
        v_add_u32 v16, s43, v16
        global_load_dword v164, v16, s[{sWO}:{sWO+1}] nt
        s_branch L_tlb3
        L_tlb2:
        v_mul_u32_u24 v16, {28*3584}, v0
        global_load_dword v164, v16, s[{sW1}:{sW1+1}] nt
        s_min_u32 s43, s{sU}, 27
        s_mul_i32 s43, s43, {64*896}
        v_mul_u32_u24 v16, {4*896}, v0
        v_add_u32 v16, s43, v16
        global_load_dword v165, v16, s[{sW2}:{sW2+1}] nt
        v_mov_b32 v16, 0
        global_load_dword v163, v16, s[{sB1}:{sB1+1}] nt
        global_load_dword v162, v16, s[{sB2}:{sB2+1}] nt
        L_tlb3:
        s_mov_b64 exec, -1""")
    control(opt.get("cend", 63) * 32)
    g.endwave()

    sC = 47
    sSEEN, sSTG = 45, 46
    vQ, vS, vD, vA = 16, 48, 64, 68
    NPRE = opt.get("npre", 3)
    vPRE = [68, 100, 132][:NPRE]
    g(f"""
    L_consumer:
    s_sub_u32 s{sC}, s{sWAVE}, 4
    s_lshl_b32 s43, s{sC}, 2
    v_add_u32 v3, s43, v{vF}
    s_mov_b32 s{sSEEN}, 0
    s_mov_b32 s{sSTG}, 0
    v_and_b32 v8, 7, v0
    v_mul_u32_u24 v8, {PAIR}, v8
    v_bfe_u32 v9, v0, 3, 1
    v_lshl_add_u32 v8, v9, 9, v8
    v_lshl_add_u32 v8, v5, 4, v8
    s_mul_i32 s43, s{sC}, {TILE}
    v_add_u32 v9, s43, v8""")
    if clr == 2:
        g(f"s_cmp_eq_u32 s{sC}, 0\ns_cbranch_scc0 L_clr_done")
        clears()
    for t in range(NPRE):
        g.lds_wait1(3, LANDED, 8 * (t + 1), sSEEN, 10)
        g(f"v_add_u32 v8, {(t % NSLOT) * SLOT}, v9\nv_mov_b32 v4, {t+1}")
        for i in range(8):
            g(f"ds_read_b128 v[{vPRE[t]+4*i}:{vPRE[t]+4*i+3}], v8 offset:{64*i}")
        g(f"ds_write_b32 v3, v4 offset:{CONSUMED-FLAGS}")
    g.lds_wait1(vF, QRDY, 1, sSTG, 8)
    g("s_waitcnt vmcnt(0)")
    g(f"""
    v_lshlrev_b32 v8, 9, v6
    v_lshl_add_u32 v8, v5, 4, v8
    v_add_u32 v8, {QL}, v8""")
    for i in range(8):
        g(f"ds_read_b128 v[{vQ+4*i}:{vQ+4*i+3}], v8 offset:{64*i}")
    g(f"""
    s_mov_b32 s40, {NPRE}
    s_mov_b32 s42, {(NPRE % NSLOT) * SLOT}
    s_waitcnt lgkmcnt(0)""")
    g.mask(48, 0x0003)
    for t in range(NPRE):
        for i in range(8):
            c = "0" if i == 0 else f"v[{vD}:{vD+3}]"
            g(f"v_mfma_f32_16x16x32_bf16 v[{vD}:{vD+3}], v[{vPRE[t]+4*i}:{vPRE[t]+4*i+3}], v[{vQ+4*i}:{vQ+4*i+3}], {c}")
        g("s_nop 7")
        for r in range(4):
            g(f"v_cndmask_b32 v{vS+r}, v{vS+r}, v{vD+r}, s[48:49]")
        g("s_lshl_b64 s[48:49], s[48:49], 2")
    for G in range(4):
        top = g.lab("krow")
        if G:
            g.mask(48, 0x0003)
        g(f"""
        {top}:
        s_add_u32 s40, s40, 1
        s_lshl_b32 s41, s40, 3""")
        g.lds_wait1(3, LANDED, "s41", sSEEN, 10)
        g(f"v_add_u32 v8, s42, v9\nv_mov_b32 v4, s40")
        for i in range(8):
            g(f"ds_read_b128 v[{vA+4*i}:{vA+4*i+3}], v8 offset:{64*i}")
        g(f"""
        ds_write_b32 v3, v4 offset:{CONSUMED-FLAGS}
        s_add_u32 s42, s42, {SLOT}
        s_cmp_eq_u32 s42, {RING_END}
        s_cselect_b32 s42, 0, s42""")
        for i in range(8):
            c = "0" if i == 0 else f"v[{vD}:{vD+3}]"
            g(f"s_waitcnt lgkmcnt({8-i})")
            g(f"v_mfma_f32_16x16x32_bf16 v[{vD}:{vD+3}], v[{vA+4*i}:{vA+4*i+3}], v[{vQ+4*i}:{vQ+4*i+3}], {c}")
        g("s_nop 7")
        for r in range(4):
            g(f"v_cndmask_b32 v{vS+4*G+r}, v{vS+4*G+r}, v{vD+r}, s[48:49]")
        g(f"""
        s_lshl_b64 s[48:49], s[48:49], 2
        s_and_b32 s43, s40, 7
        s_cbranch_scc1 {top}""")
    g.ts(5)
    for i in range(8):
        g(f"v_cvt_pk_bf16_f32 v{vA+i}, v{vS+2*i}, v{vS+2*i+1}")
    for i in range(8):
        g(f"v_lshlrev_b32 v{vS+2*i}, 16, v{vA+i}\nv_and_b32 v{vS+2*i+1}, 0xffff0000, v{vA+i}")
    vM, vL = 12, 13
    g(f"v_max3_f32 v{vM}, v{vS}, v{vS+1}, v{vS+2}")
    for i in range(3, 15, 2):
        g(f"v_max3_f32 v{vM}, v{vM}, v{vS+i}, v{vS+i+1}")
    g(f"v_max_f32 v{vM}, v{vM}, v{vS+15}")
    g.xlane("v_max_f32", vM, 10, [2, 4, 8], True, True)
    g(f"""
    v_lshl_add_u32 v14, v6, 4, v3
    v_lshl_add_u32 v15, v6, 4, v{vF}
    v_mov_b32 v4, 2
    ds_write_b32 v14, v{vM} offset:{STATM-FLAGS}
    ds_write_b32 v3, v4 offset:{STAGE-FLAGS}""")
    g.lds_wait4(vF, STAGE, 2, sSTG, 16)
    g(f"""
    ds_read_b128 v[16:19], v15 offset:{STATM-FLAGS}
    s_mov_b32 s43, {f32(1.4426950408889634/16)}
    s_waitcnt lgkmcnt(0)
    v_max3_f32 v{vM}, v16, v17, v18
    v_max_f32 v{vM}, v{vM}, v19""")
    for i in range(16):
        g(f"v_sub_f32 v{vS+i}, v{vS+i}, v{vM}")
    for i in range(16):
        g(f"v_mul_f32 v{vS+i}, s43, v{vS+i}")
    for i in range(16):
        g(f"v_exp_f32 v{vS+i}, v{vS+i}")
    g(f"v_add_f32 v{vL}, v{vS}, v{vS+1}\nv_add_f32 v10, v{vS+2}, v{vS+3}")
    for i in range(4, 16, 2):
        g(f"v_add_f32 v{vL}, v{vL}, v{vS+i}\nv_add_f32 v10, v10, v{vS+i+1}")
    g(f"v_add_f32 v{vL}, v{vL}, v10")
    g.xlane("v_add_f32", vL, 10, [2, 4, 8], True, True)
    for i in range(8):
        g(f"v_cvt_pk_bf16_f32 v{vA+i}, v{vS+2*i}, v{vS+2*i+1}")
    g(f"""
    v_bfe_u32 v8, v0, 1, 3
    v_lshlrev_b32 v8, 8, v8
    v_lshl_add_u32 v8, v6, 6, v8
    v_lshl_add_u32 v8, v5, 4, v8
    s_lshr_b32 s43, s{sC}, 1
    s_lshl_b32 s43, s43, 7
    s_and_b32 s41, s{sC}, 1
    s_lshl_b32 s41, s41, 3
    s_add_u32 s43, s43, s41
    s_add_u32 s43, s43, {PBUF}
    v_add_u32 v8, s43, v8
    v_mov_b32 v4, 3
    ds_write_b32 v14, v{vL} offset:{STATL-FLAGS}""")
    for G in range(4):
        g(f"ds_write_b64 v8, v[{vA+2*G}:{vA+2*G+1}] offset:{G*2048}")
    g(f"ds_write_b32 v3, v4 offset:{STAGE-FLAGS}")
    vP, vO = 32, 100
    g(f"""
    v_bfe_u32 v8, v0, 2, 3
    v_mul_u32_u24 v8, {PAIR}, v8
    v_lshrrev_b32 v9, 5, v0
    v_lshl_add_u32 v8, v9, 9, v8
    v_and_b32 v9, 3, v0
    v_lshl_add_u32 v8, v9, 3, v8
    s_lshl_b32 s43, s{sC}, 7
    v_add_u32 v9, s43, v8
    v_lshlrev_b32 v11, 6, v6
    v_lshl_add_u32 v11, v5, 4, v11
    v_add_u32 v11, {PBUF}, v11
    s_mov_b32 s{sSEEN}, 0""")
    for r in range(16):
        g(f"v_mov_b32 v{vO+r}, 0")
    g.lds_wait4(vF, STAGE, 3, sSTG, 16)
    g.ts(6)

    def vloop(end, sl=1):
        top = g.lab("vrow")
        g(f"""
        {top}:
        s_add_u32 s40, s40, 1
        s_lshl_b32 s41, s40, 3""")
        g.lds_wait4(vF, LANDED, "s41", sSEEN, 16, sleep=sl)
        g(f"v_add_u32 v8, s42, v9\nv_mov_b32 v4, s40")
        for pr in range(2):
            g(f"ds_read_b128 v[{vP+4*pr}:{vP+4*pr+3}], v11 offset:{128*pr}")
            for T in range(4):
                a = vA + 16*pr + 4*T
                g(f"ds_read_b64_tr_b16 v[{a}:{a+1}], v8 offset:{(2*pr)*TILE + 32*T}")
                g(f"ds_read_b64_tr_b16 v[{a+2}:{a+3}], v8 offset:{(2*pr+1)*TILE + 32*T}")
        g(f"""
        ds_write_b32 v3, v4 offset:{CONSUMED-FLAGS}
        v_add_u32 v11, 256, v11
        s_add_u32 s42, s42, {SLOT}
        s_cmp_eq_u32 s42, {RING_END}
        s_cselect_b32 s42, 0, s42""")
        for pr in range(2):
            for T in range(4):
                a = vA + 16*pr + 4*T
                need = 9*pr + 1 + 2*(T+1)
                g(f"s_waitcnt lgkmcnt({min(19-need, 15)})")
                g(f"v_mfma_f32_16x16x32_bf16 v[{vO+4*T}:{vO+4*T+3}], v[{a}:{a+3}], v[{vP+4*pr}:{vP+4*pr+3}], v[{vO+4*T}:{vO+4*T+3}]")
        g(f"""
        s_cmp_lt_u32 s40, {end}
        s_cbranch_scc1 {top}""")

    vloop(60)
    vWt = 14
    g(f"s_mov_b32 s{sSTG}, 0")
    g.lds_wait1(vF, WRDY, 1, sSTG, 16)
    g(f"""
    v_lshl_add_u32 v15, v6, 2, v{vF}
    ds_read_b32 v{vWt}, v15 offset:{WT-FLAGS}""")
    g.mask(54, 0x0c0c); g.mask(56, 0x3030); g.mask(58, 0xc0c0)
    g(f"""
    s_lshl_b32 s43, s{sREG}, 10
    s_lshl_b32 s41, s{sC}, 7
    s_add_u32 s43, s43, s41""")
    g.base(60, sWS, WS_OP, 43)
    g(f"""
    v_bfe_u32 v15, v0, 1, 2
    v_lshlrev_b32 v15, 5, v15
    v_lshl_add_u32 v15, v6, 9, v15
    v_lshl_add_u32 v15, v5, 3, v15""")
    vloop(64, opt.get("vsl", 0))
    g.ts(7)
    g("s_nop 4")
    g.select4(16, vO, 54)
    g(f"""
    s_mov_b32 exec_lo, 0x00ff00ff
    s_mov_b32 exec_hi, 0x00ff00ff
    v_mul_f32 v16, v16, v{vWt}
    v_mul_f32 v17, v17, v{vWt}
    v_mul_f32 v18, v18, v{vWt}
    v_mul_f32 v19, v19, v{vWt}
    v_cvt_pk_bf16_f32 v16, v16, v17
    v_cvt_pk_bf16_f32 v17, v18, v19
    global_store_dwordx2 v15, v[16:17], s[60:61] sc1
    s_mov_b64 exec, -1
    v_mov_b32 v4, 65
    ds_write_b32 v3, v4 offset:{CONSUMED-FLAGS}
    s_cmp_lt_u32 s{sSPLIT}, 14
    s_cbranch_scc1 L_t1
    s_cmp_lt_u32 s{sU}, 28
    s_cbranch_scc1 L_t2""")
    g.endwave()

    g(f"""
    L_t1:
    s_setprio 0
    ds_read_b32 v48, v{vF} offset:{EPL-FLAGS}
    v_lshrrev_b32 v5, 4, v0
    v_bfe_u32 v8, v0, 2, 2
    v_lshl_add_u32 v8, v5, 3, v8
    v_lshlrev_b32 v8, 6, v8
    v_and_b32 v9, 3, v0
    v_lshl_add_u32 v8, v9, 3, v8
    s_lshl_b32 s43, s{sWAVE}, 12
    v_add_u32 v8, s43, v8
    v_and_b32 v9, 15, v0
    v_lshlrev_b32 v10, 10, v9
    v_lshl_add_u32 v10, v5, 4, v10
    s_lshl_b32 s43, s{sGRP}, 14
    s_lshl_b32 s41, s{sWAVE}, 7
    s_add_u32 s43, s43, s41""")
    g.base(60, sWS, WS_OP, 43)
    g(f"""
    v_lshrrev_b32 v12, 5, v0
    v_lshl_add_u32 v12, v12, 4, v9
    v_lshlrev_b32 v12, 5, v12
    s_lshl_b32 s43, s{sWAVE}, 2
    s_add_u32 s43, s43, {RED}
    v_add_u32 v12, s43, v12
    s_lshl_b32 s43, s{sKVH}, 1
    s_add_u32 s43, s43, s{sB}
    s_mul_i32 s43, s43, 1792
    s_lshl_b32 s41, s{sSPLIT}, 7
    s_add_u32 s43, s43, s41""")
    g.base(58, sWS, WS_A1, 43)
    g(f"""
    v_and_b32 v13, 31, v0
    v_lshlrev_b32 v14, 5, v13
    v_add_u32 v14, {RED}, v14
    v_lshlrev_b32 v13, 2, v13
    v_lshlrev_b32 v49, 1, v9
    s_waitcnt lgkmcnt(0)
    v_readfirstlane_b32 s{sEPOCH}, v48""")
    g.codes(48, 1, 49)
    g(f"s_cmp_lt_u32 s{sWAVE}, 4\ns_cbranch_scc0 L_t1_nw\ns_waitcnt vmcnt(0)\nL_t1_nw:\ns_barrier")
    g.ts(8)
    top, done = g.lab("opoll"), g.lab("odone")
    g("""
    global_load_dwordx4 v[16:19], v10, s[60:61] sc1
    global_load_dwordx4 v[20:23], v10, s[60:61] offset:64 sc1""")
    for ks in range(2):
        for nt in range(2):
            a = 32 + 8*ks + 4*nt
            g(f"ds_read_b64_tr_b16 v[{a}:{a+1}], v8 offset:{ks*2048 + nt*32}")
            g(f"ds_read_b64_tr_b16 v[{a+2}:{a+3}], v8 offset:{ks*2048 + nt*32 + 256}")
    g(f"""
    {top}:
    s_waitcnt vmcnt(0) lgkmcnt(0)
    v_mfma_f32_16x16x32_bf16 v[24:27], v[16:19], v[32:35], 0
    v_max3_u32 v50, v16, v17, v18
    v_mfma_f32_16x16x32_bf16 v[28:31], v[16:19], v[36:39], 0
    v_max3_u32 v50, v50, v19, v20
    v_mfma_f32_16x16x32_bf16 v[24:27], v[20:23], v[40:43], v[24:27]
    v_max3_u32 v50, v50, v21, v22
    v_mfma_f32_16x16x32_bf16 v[28:31], v[20:23], v[44:47], v[28:31]
    v_max_u32 v50, v50, v23
    v_cmp_eq_u32 vcc, -1, v50
    s_cmp_eq_u64 vcc, 0
    s_cbranch_scc1 {done}
    s_mov_b64 exec, vcc
    {f"s_sleep {opt['sl1']}" if opt.get("sl1") else ""}
    global_load_dwordx4 v[16:19], v10, s[60:61] sc1
    global_load_dwordx4 v[20:23], v10, s[60:61] offset:64 sc1
    s_mov_b64 exec, -1
    s_sub_u32 s{sTO}, s{sTO}, 1
    s_cbranch_scc0 {top}
    {done}:""")
    g.ts(9)
    g(f"""
    s_nop 1
    v_add_f32 v24, v24, v25
    v_add_f32 v26, v26, v27
    v_add_f32 v28, v28, v29
    v_add_f32 v30, v30, v31
    v_add_f32 v24, v24, v26
    v_add_f32 v28, v28, v30
    s_nop 1
    v_permlane32_swap_b32 v24, v28
    v_add_f32 v24, v24, v28
    v_add_f32 v25, v24, 0
    s_nop 1
    v_permlane16_swap_b32 v24, v25
    v_add_f32 v24, v24, v25
    ds_write_b32 v12, v24
    s_cmp_eq_u32 s{sWAVE}, 0
    s_waitcnt lgkmcnt(0)
    s_barrier
    s_cbranch_scc0 L_t1_end
    ds_read_b128 v[16:19], v14
    ds_read_b128 v[20:23], v14 offset:16
    s_mov_b32 exec_hi, 0
    s_waitcnt lgkmcnt(1)
    v_add_f32 v16, v16, v17
    v_add_f32 v18, v18, v19
    s_waitcnt lgkmcnt(0)
    v_add_f32 v20, v20, v21
    v_add_f32 v22, v22, v23
    v_add_f32 v16, v16, v18
    v_add_f32 v20, v20, v22
    v_add_f32 v16, v16, v20
    v_bfi_b32 v16, 7, v48, v16
    global_store_dword v13, v16, s[58:59] sc1
    s_mov_b64 exec, -1
    L_t1_end:""".replace("v_add_f32 v25, v24, 0", "v_mov_b32 v25, v24"))
    g.ts(10)
    g.endwave()

    vW1, vW2 = 64, 120
    YSTR = opt.get("ystr", 3840)
    g(f"""
    L_t2:
    s_setprio 0
    ds_read_b32 v48, v{vF} offset:{EPL-FLAGS}
    v_lshrrev_b32 v5, 4, v0
    v_and_b32 v6, 1, v0
    s_waitcnt lgkmcnt(0)
    v_readfirstlane_b32 s{sEPOCH}, v48
    s_cmp_eq_u32 s{sWAVE}, 7
    s_cbranch_scc1 L_fin""")
    g(f"""
    v_lshrrev_b32 v7, 5, v0
    v_mul_u32_u24 v10, 896, v7
    v_and_b32 v11, 31, v0
    v_lshl_add_u32 v10, v11, 2, v10
    s_lshl_b32 s43, s{sWAVE}, 7
    v_add_u32 v10, s43, v10
    global_load_dword v14, v10, s[{sX}:{sX+1}] {xpol}
    v_lshlrev_b32 v11, 1, v10
    v_add_u32 v15, 7168, v11
    v_add_u32 v37, {XN}, v10
    v_add_u32 v10, {HB}, v10
    v_lshlrev_b32 v7, 6, v7
    v_add_u32 v7, {RED}, v7
    s_lshl_b32 s43, s{sWAVE}, 2
    v_add_u32 v36, s43, v7
    v_and_b32 v16, 16, v0
    v_lshl_add_u32 v36, v16, 1, v36
    v_bfe_u32 v16, v0, 1, 2
    s_and_b32 s41, s{sWAVE}, 3
    s_lshl_b32 s41, s41, 5
    v_lshlrev_b32 v3, 3, v5
    v_lshl_add_u32 v3, v16, 1, v3
    v_add_u32 v3, s41, v3
    s_lshl_b32 s43, s{sU}, 7
    v_add_u32 v17, s43, v3
    global_load_ushort v60, v17, s[{sB1}:{sB1+1}] {xpol}
    v_lshl_add_u32 v3, v6, 7, v3
    v_add_u32 v3, {FB}, v3
    v_lshlrev_b32 v4, 7, v6
    v_lshl_add_u32 v4, v5, 4, v4
    v_add_u32 v4, {FB}, v4
    v_mul_u32_u24 v8, 1792, v6
    v_lshl_add_u32 v8, v16, 6, v8
    v_lshl_add_u32 v8, v5, 4, v8
    v_mul_u32_u24 v9, 896, v6
    v_lshl_add_u32 v9, v5, 4, v9
    v_add_u32 v9, {XN}, v9
    v_bfe_u32 v16, v0, 2, 2
    v_lshl_add_u32 v16, v5, 3, v16
    v_and_b32 v17, 3, v0
    v_lshlrev_b32 v17, 3, v17
    v_bfe_u32 v18, v0, 3, 2
    v_lshlrev_b32 v18, 5, v18
    v_xor_b32 v18, s41, v18
    v_lshl_add_u32 v12, v16, 7, v17
    v_add_u32 v12, v12, v18
    v_mul_u32_u24 v13, 928, v16
    v_lshl_add_u32 v13, v5, 7, v13
    v_add_u32 v13, v13, v17
    s_lshl_b32 s43, s{sWAVE}, 7
    s_add_u32 s43, s43, {W2L}
    v_add_u32 v13, s43, v13
    v_lshlrev_b32 v33, 3, v5""")
    g.codes(16, 4, 33)
    g("v_mov_b32 v1, v16\nv_mov_b32 v61, v17\nv_mov_b32 v62, v18\nv_mov_b32 v63, v19")
    g("v_and_b32 v33, 7, v0\nv_lshlrev_b32 v33, 2, v33")
    g.codes(34, 2, 33)
    g.mask(54, 0x0c0c); g.mask(56, 0x3030); g.mask(58, 0xc0c0)
    g(f"""
    s_mul_i32 s43, s{sU}, {YSTR}
    s_lshl_b32 s41, s{sWAVE}, 8
    s_add_u32 s43, s43, s41""")
    g.base(48, sWS, WS_Y2, 43)
    g.base(60, sWS, WS_A1)
    g.base(62, sWS, WS_A1 + 4 * 3584)
    g(f"""
    s_waitcnt vmcnt(0)
    v_lshlrev_b32 v60, 16, v60
    v_lshlrev_b32 v38, 16, v14
    v_and_b32 v39, 0xffff0000, v14
    s_barrier""")
    g.ts(8)

    def frags():
        g(f"s_cmp_lt_u32 s{sWAVE}, 4\ns_cbranch_scc0 L_t2_now1")
        for j in range(14):
            a = vW1 + 4*j
            g(f"ds_read_b64_tr_b16 v[{a}:{a+1}], v12 offset:{j*4096}")
            g(f"ds_read_b64_tr_b16 v[{a+2}:{a+3}], v12 offset:{j*4096 + 512}")
        g("L_t2_now1:")
        for ks in range(2):
            for t in range(4):
                a = vW2 + 16*ks + 4*t
                g(f"ds_read_b64_tr_b16 v[{a}:{a+1}], v13 offset:{ks*W2KS + t*32}")
                g(f"ds_read_b64_tr_b16 v[{a+2}:{a+3}], v13 offset:{ks*W2KS + t*32 + 4*928}")

    def asum():
        for st in (8, 4, 2):
            for i in range(0, st, 2):
                if opt.get("pk", 1):
                    g(f"v_pk_add_f32 v[{16+i}:{17+i}], v[{16+i}:{17+i}], v[{16+st+i}:{17+st+i}]")
                else:
                    g(f"v_add_f32 v{16+i}, v{16+i}, v{16+st+i}\nv_add_f32 v{17+i}, v{17+i}, v{17+st+i}")
    g.multipoll([(f"global_load_dwordx2 v[{40+2*k}:{41+2*k}], v{11 if (k & 2) == 0 else 15}, s[{60+2*(k//4)}:{61+2*(k//4)}] offset:{(k&1)*3584} sc1",
                  [40+2*k, 41+2*k], False) for k in range(8)], [34, 35], 16, 32, opt.get("sl2", 0), opt.get("trace"),
                after_issue=frags, shadow=asum, smask=[32, 34, 96, 98, 100, 40, 44, 46])
    g.ts(9)
    g(f"""
    v_cvt_pk_bf16_f32 v16, v16, v17
    v_lshlrev_b32 v20, 16, v16
    v_and_b32 v21, 0xffff0000, v16
    v_add_f32 v18, v38, v20
    v_add_f32 v19, v39, v21
    v_cvt_pk_bf16_f32 v14, v18, v19
    v_lshlrev_b32 v56, 16, v14
    v_and_b32 v57, 0xffff0000, v14
    v_mul_f32 v17, v56, v56
    v_add_f32 v16, v56, v57
    v_fmac_f32 v17, v57, v57
    ds_write_b32 v10, v14""")
    for r in (1, 2, 4, 8):
        g(f"""
        v_add_f32_dpp v16, v16, v16 row_ror:{r} row_mask:0xf bank_mask:0xf
        v_add_f32_dpp v17, v17, v17 row_ror:{r} row_mask:0xf bank_mask:0xf
        s_nop {1 if r == 8 else 0}""")
    g(f"""
    v_permlane16_swap_b32 v16, v17
    v_add_f32 v16, v16, v17
    ds_write_b32 v36, v16
    s_mov_b32 s43, {f32(1.0/448)}
    s_waitcnt lgkmcnt(0)
    s_barrier
    ds_read_b128 v[16:19], v7
    ds_read_b128 v[20:23], v7 offset:16
    ds_read_b128 v[24:27], v7 offset:32
    ds_read_b128 v[28:31], v7 offset:48
    s_waitcnt lgkmcnt(2)
    v_add_f32 v16, v16, v17
    v_add_f32 v18, v18, v19
    v_add_f32 v20, v20, v21
    v_add_f32 v16, v16, v18
    v_add_f32 v20, v20, v22
    v_add_f32 v40, v16, v20
    s_waitcnt lgkmcnt(0)
    v_add_f32 v24, v24, v25
    v_add_f32 v26, v26, v27
    v_add_f32 v28, v28, v29
    v_mul_f32 v40, s43, v40
    v_add_f32 v24, v24, v26
    v_add_f32 v28, v28, v30
    v_mul_f32 v42, v40, v40
    v_add_f32 v41, v24, v28
    v_fma_f32 v41, v41, s43, -v42
    v_max_f32 v41, 0, v41
    v_cvt_pk_bf16_f32 v41, v40, v41
    v_lshlrev_b32 v40, 16, v41
    v_and_b32 v41, 0xffff0000, v41
    v_add_f32 v41, {f32(1e-5)}, v41""")
    g.rbf(41)
    g(f"""
    v_sqrt_f32 v41, v41
    v_sub_f32 v56, v56, v40
    v_cvt_pk_bf16_f32 v41, v41, v41
    v_sub_f32 v57, v57, v40
    v_and_b32 v41, 0xffff0000, v41
    v_rcp_f32 v41, v41
    v_cvt_pk_bf16_f32 v14, v56, v57
    v_lshlrev_b32 v56, 16, v14
    v_and_b32 v57, 0xffff0000, v14
    v_mul_f32 v56, v56, v41
    v_mul_f32 v57, v57, v41
    v_cvt_pk_bf16_f32 v14, v56, v57
    ds_write_b32 v37, v14
    s_cmp_lt_u32 s{sWAVE}, 4
    s_waitcnt lgkmcnt(0)
    s_barrier""")
    g.ts(10)
    g("s_cbranch_scc0 L_no_ffn1")
    vHF = [16 + 4*j for j in range(10)] + [152 + 4*j for j in range(4)]
    for j in range(14):
        g(f"ds_read_b128 v[{vHF[j]}:{vHF[j]+3}], v9 offset:{64*j}")
    for j in range(14):
        c = "0" if j == 0 else "v[56:59]"
        g(f"s_waitcnt lgkmcnt({13-j})")
        g(f"v_mfma_f32_16x16x32_bf16 v[56:59], v[{vW1+4*j}:{vW1+4*j+3}], v[{vHF[j]}:{vHF[j]+3}], {c}")
    g(f"""
    s_nop 7
    v_cndmask_b32 v16, v56, v57, s[54:55]
    v_cndmask_b32 v16, v16, v58, s[56:57]
    v_cndmask_b32 v16, v16, v59, s[58:59]
    v_cvt_pk_bf16_f32 v16, v16, v16
    v_and_b32 v16, 0xffff0000, v16
    v_add_f32 v16, v16, v60
    v_cvt_pk_bf16_f32 v16, v16, v16
    v_and_b32 v16, 0xffff0000, v16
    v_max_f32 v16, 0, v16
    v_mul_f32 v16, v16, v16
    v_cvt_pk_bf16_f32 v16, v16, v16
    ds_write_b16 v3, v16
    s_waitcnt lgkmcnt(0)
    L_no_ffn1:
    s_barrier
    ds_read_b128 v[16:19], v4
    ds_read_b128 v[20:23], v4 offset:64
    s_waitcnt lgkmcnt(1)""")
    for t in range(4):
        g(f"v_mfma_f32_16x16x32_bf16 v[{32+4*t}:{35+4*t}], v[{vW2+4*t}:{vW2+4*t+3}], v[16:19], 0")
    g("s_waitcnt lgkmcnt(0)")
    for t in range(4):
        g(f"v_mfma_f32_16x16x32_bf16 v[{32+4*t}:{35+4*t}], v[{vW2+16+4*t}:{vW2+16+4*t+3}], v[20:23], v[{32+4*t}:{35+4*t}]")
    g("s_mov_b32 exec_lo, 0x00ff00ff\ns_mov_b32 exec_hi, 0x00ff00ff\ns_nop 3")
    g.select4(16, 32, 54)
    for r, c in enumerate((1, 61, 62, 63)):
        g(f"v_bfi_b32 v{16+r}, 7, v{c}, v{16+r}")
    g(f"""
    global_store_dwordx4 v8, v[16:19], s[48:49] sc1
    s_mov_b64 exec, -1
    s_barrier""")
    g.ts(11)
    g.endwave()

    g(f"""
    L_fin:
    s_cmp_ge_u32 s{sU}, 14
    s_cselect_b32 s41, 14, 0
    s_sub_u32 s41, s{sU}, s41
    s_lshl_b32 s41, s41, 6
    v_and_b32 v10, 7, v0
    v_lshlrev_b32 v10, 3, v10
    v_and_b32 v11, 1, v5
    v_lshl_add_u32 v11, v11, 2, v10
    v_lshrrev_b32 v12, 5, v0
    v_lshl_add_u32 v11, v12, 1, v11
    v_add_u32 v12, s41, v11
    global_load_ushort v40, v12, s[{sB2}:{sB2+1}] {xpol}
    s_lshl_b32 s43, s{sU}, 6
    v_add_u32 v12, s43, v11
    v_add_u32 v13, {HB}, v12
    v_add_u32 v10, s43, v10
    v_lshrrev_b32 v14, 3, v0
    v_mul_u32_u24 v14, {YSTR}, v14
    v_lshl_add_u32 v14, v10, 1, v14""")
    for i in range(4):
        g.base(54 + 2*i, sWS, WS_Y2 + i * 8 * YSTR)
    g(f"""
    v_and_b32 v33, 3, v0
    v_lshlrev_b32 v33, 3, v33""")
    g.codes(34, 4, 33)
    g(f"""
    v_mov_b32 v60, v34
    v_mov_b32 v61, v35
    v_mov_b32 v62, v36
    v_mov_b32 v63, v37
    s_barrier
    s_barrier
    ds_read_u16 v41, v13
    s_waitcnt vmcnt(0) lgkmcnt(0)
    v_lshlrev_b32 v40, 16, v40
    v_lshlrev_b32 v41, 16, v41
    s_barrier
    s_barrier
    s_barrier""")
    g.ts(11)
    if opt.get("fd", 11):
        g(f"s_sleep {opt.get('fd', 11)}")

    def ysum():
        for st in (8, 4):
            for i in range(0, st, 2):
                if opt.get("pk", 1):
                    g(f"v_pk_add_f32 v[{16+i}:{17+i}], v[{16+i}:{17+i}], v[{16+st+i}:{17+st+i}]")
                else:
                    g(f"v_add_f32 v{16+i}, v{16+i}, v{16+st+i}\nv_add_f32 v{17+i}, v{17+i}, v{17+st+i}")
    g.multipoll([(f"global_load_dwordx4 v[{48+4*k}:{51+4*k}], v14, s[{54+2*k}:{55+2*k}] sc1", list(range(48+4*k, 52+4*k)), k == 3) for k in range(4)],
                [34, 35, 36, 37], 16, 32, opt.get("sl3", 0), opt.get("trace"), shadow=ysum, smask=[32, 34, 96, 98])
    g.ts(12)
    g(f"""
    v_permlane32_swap_b32 v16, v17
    v_permlane32_swap_b32 v18, v19
    v_add_f32 v16, v16, v17
    v_add_f32 v18, v18, v19
    s_nop 1
    v_permlane16_swap_b32 v16, v18
    v_add_f32 v16, v16, v18
    s_nop 1
    v_add_f32_dpp v16, v16, v16 row_ror:8 row_mask:0xf bank_mask:0xf
    v_cvt_pk_bf16_f32 v16, v16, v16
    v_and_b32 v16, 0xffff0000, v16
    v_add_f32 v16, v16, v40
    v_cvt_pk_bf16_f32 v16, v16, v16
    v_and_b32 v16, 0xffff0000, v16
    v_add_f32 v16, v16, v41
    v_cvt_pk_bf16_f32 v16, v16, v16
    s_mov_b32 exec_lo, 0x00ff00ff
    s_mov_b32 exec_hi, 0x00ff00ff
    global_store_short v12, v16, s[{sOUT}:{sOUT+1}]
    s_cmp_eq_u32 s{sU}, 0
    s_cbranch_scc0 L_fin_end
    s_mov_b64 exec, 1
    s_add_u32 s43, s{sEPOCH}, 1
    s_and_b32 s43, s43, 7
    s_andn2_b32 s41, s{sEPOCH}, 7
    s_or_b32 s43, s43, s41
    v_mov_b32 v16, s43
    v_mov_b32 v17, {WS_EPOCH}
    global_store_dword v17, v16, s[{sWS}:{sWS+1}]
    L_fin_end:
    s_mov_b64 exec, -1""")
    g.ts(13)
    g.endwave()

    if opt.get("ts"):
        g(f"""
        L_dump:
        s_waitcnt vmcnt(0) lgkmcnt(0)""")
        g.ts(14)
        g(f"""
        s_getreg_b32 s{sTS+30}, hwreg(HW_REG_XCC_ID)
        s_lshl_b32 s43, s2, 4
        s_add_u32 s43, s43, s{sWAVE}
        s_lshl_b32 s43, s43, 6""")
        g.base(60, sWS, WS_TS, 43)
        g("s_mov_b64 exec, 1\nv_mov_b32 v1, 0")
        for k in range(16):
            g(f"v_mov_b32 v16, s{sTS+2*k}\nglobal_store_dword v1, v16, s[60:61] offset:{4*k}")
    g("L_exit:\ns_endpgm\nL_code_end:")

    ref = open(f"cdna_kernels/{NAME}.s.ref").read().split("\n")
    head = []
    for line in ref:
        if line.startswith("; @launch"):
            head.append(f"; @launch grid=(256,1,1) block=(576,1,1) lds={LDS_SIZE}")
            break
        head.append(line)
    out = "\n".join(head) + f"""
.amdgcn_target "amdgcn-amd-amdhsa--gfx950"
.text
.globl {KN}
.p2align 8
.type {KN},@function
{KN}:
""" + "\n".join(g.L) + f"""
.section .rodata,"a"
.p2align 6
.amdhsa_kernel {KN}
  .amdhsa_next_free_vgpr 168
  .amdhsa_next_free_sgpr 102
  .amdhsa_accum_offset 168
  .amdhsa_group_segment_fixed_size 0
  .amdhsa_kernarg_size 104
  .amdhsa_user_sgpr_count 2
  .amdhsa_user_sgpr_kernarg_segment_ptr 1
  .amdhsa_system_sgpr_workgroup_id_x 1
.end_amdhsa_kernel
"""
    return out


if __name__ == "__main__":
    out = sys.argv[1]
    opt = {}
    for a in sys.argv[2:]:
        k, v = a.split("=", 1)
        if k == "W":
            v = [int(c, 16) for c in v]
            v = (v * 8)[:8]
        elif v.lstrip("-").isdigit():
            v = int(v)
        opt[k] = v
    open(out, "w").write(gen(opt))
```

```python
import struct
import sys

NAME = "sequential_preLN__gqa_block_cached__dense_activation_squared_relu__decode"
KN = NAME + "_kernel"

DOC = """
;
"""


def f32(x):
    return "0x%08x" % struct.unpack("<I", struct.pack("<f", x))[0]


PAIR = 1056
TILE = 8 * PAIR
SLOT = 4 * TILE
NSLOT = 4
RING_END = NSLOT * SLOT
PBUF = RING_END
WQS = RING_END
XN = WQS + 14336
QL = XN + 1792
HB = QL + 1024
FB = HB + 1792
RED = FB + 256
FLAGS = RED + 1024
LANDED = 0
CONSUMED = 16
STAGE = 32
QRDY = 48
WRDY = 52
EPL = 56
CLM = 60
STATM = 64
STATL = 96
LAM = 128
WT = 144
LOCF = 152
LDS_SIZE = FLAGS + 256
W2KS = 32 * 928 + 512
W2L = 57344

WS_EPOCH = 0
WS_ML = 0x10000
WS_OP = 0x20000
WS_A1 = 0x60000
WS_Y2 = 0x70000
YSTR = 3840
WS_QP = 0x90000
WS_PG = 0xd0000
WS_RC = 0xd8000
WS_GX = 0xe0000
WS_TS = 0x100000

TAGC = 0x9E3779B9
SPIN = 1 << 20
LOG2E_16 = 1.4426950408889634 / 16

sX, sK, sV, sWQ, sWO, sW1, sB1 = 4, 6, 8, 10, 12, 16, 18
sW2, sB2, sOUT, sRC, sWS = 20, 22, 24, 26, 28
sLOC, sWAVE = 0, 3
sKVH, sJ, sB, sSPLIT, sGRP, sREG, sU = 30, 31, 36, 37, 38, 39, 50
sSRD = 32
sEPOCH, sTAG, sTO = 51, 52, 53
sTS = 64
vF = 2

PATTERN = "l5 w1 b6 w0 s0 b5 s2 s1 s5 b4 s7 s6 b3 s3 s4 b2 b1 b0 b7".split()
POS = {n: 9 + i for i, n in enumerate(PATTERN)}
SRD = f"s[{sSRD}:{sSRD+3}]"


class Gen:
    def __init__(self, opt):
        self.L = []
        self.opt = opt
        self.uid = 0

    def __call__(self, s):
        for line in s.split("\n"):
            line = line.strip()
            if line:
                self.L.append(line if line.endswith(":") else "    " + line)

    def lab(self, base):
        self.uid += 1
        return f"L_{base}_{self.uid}"

    def ts(self, k):
        t = self.opt.get("ts")
        if t == 1 or (t == 2 and (k <= 6 or k == 14)):
            self(f"s_waitcnt lgkmcnt(0)\ns_memrealtime s[{sTS+2*k}:{sTS+2*k+1}]\ns_waitcnt lgkmcnt(0)")

    def endwave(self):
        self("s_branch L_dump" if self.opt.get("ts") else "s_endpgm")

    def srd(self, ptr, size):
        self(f"s_mov_b64 s[{sSRD}:{sSRD+1}], s[{ptr}:{ptr+1}]\ns_mov_b32 s{sSRD+2}, {size}\ns_mov_b32 s{sSRD+3}, 0x20000")

    def base(self, dst, const, off=None):
        if off is None:
            self(f"s_add_u32 s{dst}, s{sWS}, {const}\ns_addc_u32 s{dst+1}, s{sWS+1}, 0")
        else:
            self(f"s_add_u32 s{off}, s{off}, {const}\ns_add_u32 s{dst}, s{sWS}, s{off}\ns_addc_u32 s{dst+1}, s{sWS+1}, 0")

    def mask(self, dst, pat16):
        self(f"s_mov_b32 s{dst}, 0x{pat16 | (pat16 << 16):08x}\ns_mov_b32 s{dst+1}, s{dst}")

    def deposit(self, dst, src, pairs, tmp):
        runs = []
        for sb, db in sorted(pairs):
            if runs and runs[-1][0] + runs[-1][2] == sb and runs[-1][1] + runs[-1][2] == db:
                runs[-1][2] += 1
            else:
                runs.append([sb, db, 1])
        for sb, db, n in runs:
            self(f"s_bfe_u32 s{tmp}, s{src}, 0x{sb | (n << 16):x}\ns_lshl_b32 s{tmp}, s{tmp}, {db}\ns_add_u32 s{dst}, s{dst}, s{tmp}")

    def retry(self, top):
        self(f"s_sub_u32 s{sTO}, s{sTO}, 1\ns_cbranch_scc0 {top}\ns_mov_b32 s{sTO}, 0")

    def lds_wait(self, n, vaddr, off, target, sseen, vt, sleep=1):
        top, done = self.lab("wait"), self.lab("waited")
        self(f"s_cmp_ge_u32 s{sseen}, {target}\ns_cbranch_scc1 {done}\n{top}:")
        if n == 4:
            self(f"""
            ds_read_b128 v[{vt}:{vt+3}], v{vaddr} offset:{off}
            s_waitcnt lgkmcnt(0)
            v_min3_u32 v{vt}, v{vt}, v{vt+1}, v{vt+2}
            v_min_u32 v{vt}, v{vt}, v{vt+3}
            s_nop 0""")
        else:
            self(f"ds_read_b32 v{vt}, v{vaddr} offset:{off}\ns_waitcnt lgkmcnt(0)")
        self(f"v_readfirstlane_b32 s{sseen}, v{vt}\ns_cmp_ge_u32 s{sseen}, {target}\ns_cbranch_scc1 {done}")
        if sleep:
            self(f"s_sleep {sleep}")
        self.retry(top)
        self(f"{done}:")

    def xlane(self, op, v, vt, rors, s16, s32):
        for r in rors:
            self(f"s_nop 1\n{op}_dpp v{v}, v{v}, v{v} row_ror:{r} row_mask:0xf bank_mask:0xf")
        for on, w in ((s16, 16), (s32, 32)):
            if on:
                self(f"v_mov_b32 v{vt}, v{v}\ns_nop 1\nv_permlane{w}_swap_b32 v{v}, v{vt}\n{op} v{v}, v{v}, v{vt}")

    def rbf(self, v):
        self(f"v_cvt_pk_bf16_f32 v{v}, v{v}, v{v}\nv_and_b32 v{v}, 0xffff0000, v{v}")

    def select4(self, dst, acc, m):
        for t in range(3):
            for r in range(4):
                self(f"v_cndmask_b32 v{dst+r}, v{(dst if t else acc)+r}, v{acc+4*t+4+r}, s[{m+2*t}:{m+2*t+1}]")

    def code(self, dst, vi):
        self(f"""
        s_mov_b32 s43, 0x3c2b1605
        v_lshrrev_b32 v{dst}, v{vi}, s43
        v_add_u32 v{dst}, s{sEPOCH}, v{dst}
        v_and_b32 v{dst}, 63, v{dst}""")

    def gather4(self, loads, raw, vc, out, vt, sleep, smask, after_issue=None, pairs=None):
        top, done = self.lab("poll"), self.lab("polled")

        def issue(ins, lo):
            self(f"s_mov_b32 exec_hi, 0\n{ins}\ns_mov_b32 exec_hi, -1" if lo else ins)
        for ins, lo in loads:
            issue(ins, lo)
        if after_issue:
            after_issue()
        x = [out, out + 4, out + 8, out + 9]
        self(f"{top}:\ns_waitcnt vmcnt(0)")
        for k in range(4):
            self(f"v_xor_b32 v{x[k]}, v{raw+4*k}, v{vc}")
        self(f"""
        v_or3_b32 v{vt}, v{x[0]}, v{x[1]}, v{x[2]}
        v_bitop3_b32 v{vt}, v{vt}, v{x[3]}, 63 bitop3:0xa8
        v_cmp_ne_u32 vcc, 0, v{vt}
        v_add_f32 v{out}, v{x[0]}, v{x[2]}
        v_add_f32 v{out+4}, v{x[1]}, v{x[3]}
        v_add_f32 v{out+1}, v{raw+1}, v{raw+9}
        v_add_f32 v{out+5}, v{raw+5}, v{raw+13}
        v_pk_add_f32 v[{out+2}:{out+3}], v[{raw+2}:{raw+3}], v[{raw+10}:{raw+11}]
        v_pk_add_f32 v[{out+6}:{out+7}], v[{raw+6}:{raw+7}], v[{raw+14}:{raw+15}]""")
        if not pairs:
            self(f"""
            v_pk_add_f32 v[{out}:{out+1}], v[{out}:{out+1}], v[{out+4}:{out+5}]
            v_pk_add_f32 v[{out+2}:{out+3}], v[{out+2}:{out+3}], v[{out+6}:{out+7}]""")
        self(f"s_cmp_eq_u64 vcc, 0\ns_cbranch_scc1 {done}")
        if sleep:
            self(f"s_sleep {sleep}")
        for k in range(4):
            self(f"v_bitop3_b32 v{vt}, v{raw+4*k}, v{vc}, 63 bitop3:0x28\nv_cmp_ne_u32 s[{smask[k]}:{smask[k]+1}], 0, v{vt}")
        for k, (ins, lo) in enumerate(loads):
            sk = self.lab("have")
            self(f"s_cmp_eq_u64 s[{smask[k]}:{smask[k]+1}], 0\ns_cbranch_scc1 {sk}")
            issue(ins, lo)
            self(f"{sk}:")
        self.retry(top)
        self(f"{done}:")

    def classline(self, dst, area):
        self(f"""
        s_getreg_b32 s43, hwreg(HW_REG_XCC_ID, 0, 4)
        s_lshl3_add_u32 s43, s43, s{sKVH}
        s_lshl_b32 s43, s43, 7""")
        self.base(dst, area, 43)

    def store_loc(self, ins):
        a, b = self.lab("far"), self.lab("stored")
        self(f"s_cmp_eq_u32 s{sLOC}, 0\ns_cbranch_scc1 {a}\n{ins}\ns_branch {b}\n{a}:\n{ins} sc1\n{b}:")

    def get_epoch(self, vt):
        self(f"ds_read_b32 v{vt}, v{vF} offset:{EPL}\ns_waitcnt lgkmcnt(0)\nv_readfirstlane_b32 s{sEPOCH}, v{vt}")


def gen(opt):
    g = Gen(opt)
    o = opt.get
    WMIN, WMAX = 3, 7
    LAM0 = o("lam", 10)
    LAMMAX = 8 * (WMAX - WMIN)

    def poff(j):
        return sum(((j >> i) & 1) << POS[f"s{i}"] for i in range(3))
    ROWP = [(i, POS[f"s{3+i}"]) for i in range(5)]

    def common():
        g(f"""
        s_load_dwordx16 s[4:19], s[0:1], 0
        s_load_dwordx8 s[20:27], s[0:1], 64
        s_load_dwordx2 s[28:29], s[0:1], 96
        s_lshr_b32 s{sWAVE}, s{sWAVE}, 6
        v_mov_b32 v{vF}, {FLAGS}
        s_brev_b32 s{sKVH}, s2
        s_lshr_b32 s{sKVH}, s{sKVH}, 29
        s_lshr_b32 s{sJ}, s2, 3
        s_lshr_b32 s{sB}, s{sJ}, 4
        s_and_b32 s{sSPLIT}, s{sJ}, 15
        s_lshl3_add_u32 s{sGRP}, s{sB}, s{sKVH}
        s_lshl4_add_u32 s{sREG}, s{sGRP}, s{sSPLIT}
        s_lshl1_add_u32 s{sU}, s{sGRP}, s{sSPLIT}
        s_sub_u32 s{sU}, s{sU}, 14
        s_mov_b32 s{sTO}, {SPIN}""")

    g(f"""
    s_cmpk_ge_u32 s2, 256
    s_cbranch_scc1 L_exit""")
    if o("perm") == 1:
        g("s_lshl_b32 s3, s2, 3\ns_lshr_b32 s2, s2, 5\ns_or_b32 s2, s2, s3\ns_and_b32 s2, s2, 255")
    if o("perm") == 2:
        g("s_cmp_lt_u32 s2, 2\ns_cselect_b32 s3, 1, 0\ns_xor_b32 s2, s2, s3")
    g(f"""
    s_load_dwordx2 s[{sSRD}:{sSRD+1}], s[0:1], 8
    s_getpc_b64 s[62:63]
    L_pc0:
    v_mul_u32_u24 v1, {o("pfs", 24)}, v0
    v_readfirstlane_b32 s{sWAVE}, v0
    global_load_dword v167, v1, s[62:63]""")
    if o("ts"):
        for k in range(16):
            g(f"s_mov_b64 s[{sTS+2*k}:{sTS+2*k+1}], 0")
        g(f"s_memrealtime s[{sTS}:{sTS+1}]")
    g(f"""
    v_and_b32 v0, 63, v0
    v_lshlrev_b32 v1, 4, v0
    s_cmpk_ge_u32 s{sWAVE}, 256
    s_cbranch_scc1 L_notloader""")

    assert [POS[n] for n in "l5 w1 b6 w0 b5 b4 b3 b2 b1 b0 b7".split()] == [9, 10, 11, 12, 14, 18, 21, 24, 25, 26, 27]
    ld = f"buffer_load_dwordx4 v1, {SRD}, s43 offen nt lds"
    g(f"""
    s_bfe_u32 s56, s2, 0x40003
    s_mul_i32 s56, s56, {(1 << 8) + (1 << 12) + (1 << 17) + (1 << 21)}
    s_and_b32 s56, s56, {(1 << 11) + (1 << 14) + (1 << 18) + (1 << 21)}
    s_brev_b32 s43, s2
    s_lshr_b32 s43, s43, 29
    s_lshr_b32 s57, s2, 7
    s_lshl3_add_u32 s43, s57, s43
    s_lshl_b32 s43, s43, 24
    s_add_u32 s56, s56, s43
    s_mul_i32 s57, s{sWAVE}, 36
    s_and_b32 s57, s57, {(1 << 9) + (1 << 11)}
    s_lshl1_add_u32 s57, s57, s56
    s_mul_i32 s47, s{sWAVE}, {TILE // 64}
    s_mov_b32 m0, s47
    s_mov_b32 s43, s57
    s_brev_b32 s{sSRD+2}, 8
    s_mov_b32 s{sSRD+3}, 0x20000
    s_waitcnt lgkmcnt(0)
    {ld}
    s_addk_i32 m0, {PAIR}
    s_bitset1_b32 s43, {POS["s0"]}
    {ld}
    s_addk_i32 m0, {2*PAIR}
    s_bitset1_b32 s43, {POS["s1"]}
    {ld}
    s_addk_i32 m0, {-PAIR}
    s_bitset0_b32 s43, {POS["s0"]}
    {ld}
    s_addk_i32 m0, {2*PAIR}
    s_bitset0_b32 s43, {POS["s1"]}
    s_bitset1_b32 s43, {POS["s2"]}
    {ld}
    s_setprio 3""")
    NF = 5
    g.ts(3)
    common()
    g(f"""
    s_mov_b32 s40, 0
    s_mov_b32 s41, s57
    s_mov_b32 s42, s47
    s_mov_b32 s46, 0
    s_mov_b32 s45, 0
    s_mov_b32 s49, {LAM0}
    s_mov_b32 s55, 0
    s_lshl_b32 s43, s{sWAVE}, 2
    v_add_u32 v3, s43, v{vF}""")

    def window(phase):
        go = g.lab("go")
        g(f"s_waitcnt vmcnt({WMAX})")
        for w in range(WMAX - 1, WMIN - 1, -1):
            g(f"s_cmp_ge_u32 s49, {max(8*(w+1-WMIN) - phase, 0)}\ns_cbranch_scc1 {go}\ns_add_u32 s54, s54, 1\ns_waitcnt vmcnt({w})")
        g(f"{go}:\n{ld}")

    def piece(j):
        g(f"""
        L_piece{j}:
        s_add_u32 m0, s42, {j*PAIR}
        s_add_u32 s43, s41, {poff(j)}
        s_sub_u32 s54, s55, {WMAX - j}""")
        window([0, 4, 2, 6, 1, 5, 3, 7][j])
        g(f"s_max_i32 s54, s54, 0\nv_mov_b32 v4, s54\nds_write_b32 v3, v4 offset:{LANDED}")
        if j == 6:
            g(f"""
            s_cmp_eq_u32 s40, 0
            s_cbranch_scc0 L_flags_ok
            s_waitcnt lgkmcnt(0)
            s_barrier
            L_flags_ok:
            ds_read_b128 v[8:11], v{vF} offset:{CONSUMED}
            ds_read_b32 v12, v3 offset:{LAM}""")
    for j in range(NF, 8):
        piece(j)
    g("s_add_u32 s40, s40, 1\ns_add_u32 s55, s55, 8\ns_mov_b32 s41, s57")
    g.deposit(41, 40, ROWP, 43)
    g(f"""
    s_add_u32 s46, s46, {SLOT}
    s_cmp_eq_u32 s46, {RING_END}
    s_cselect_b32 s46, 0, s46
    s_waitcnt lgkmcnt(1)
    v_min3_u32 v8, v8, v9, v10
    v_min_u32 v8, v8, v11
    v_readfirstlane_b32 s49, v12
    v_readfirstlane_b32 s45, v8
    s_sub_u32 s48, s40, {NSLOT-1}
    s_max_i32 s48, s48, 0
    s_add_u32 s49, s49, {LAM0}""")
    g.lds_wait(4, vF, CONSUMED, "s48", 45, 8)
    if o("ts"):
        for rr, kk in ((1, 4), (8, 5)):
            lb = g.lab("tsk")
            g(f"s_cmp_eq_u32 s40, {rr}\ns_cbranch_scc0 {lb}")
            g.ts(kk)
            g(f"{lb}:")
    g("s_cmp_eq_u32 s40, 32\ns_cbranch_scc0 L_row_same")
    g.ts(1)
    g(f"""
    s_mov_b64 s[{sSRD}:{sSRD+1}], s[{sV}:{sV+1}]
    L_row_same:
    s_cmp_lt_u32 s40, 63
    s_cbranch_scc0 L_rows_done
    s_add_u32 s42, s46, s47""")
    for j in range(NF):
        piece(j)
    g(f"""
    s_branch L_piece{NF}
    L_rows_done:
    v_mov_b32 v13, 1
    L_dyn:
    s_mov_b64 exec, 1
    ds_add_rtn_u32 v12, v{vF}, v13 offset:{CLM}
    s_mov_b64 exec, -1
    s_sub_u32 s54, s55, {WMAX}
    s_waitcnt lgkmcnt(0)
    v_readfirstlane_b32 s48, v12
    s_cmp_ge_u32 s48, 32
    s_cbranch_scc1 L_dyn_end
    s_and_b32 s42, s48, 3
    s_lshr_b32 s48, s48, 2
    s_lshl3_add_u32 s48, s42, s48
    s_mul_i32 s42, s48, {PAIR}
    s_add_u32 m0, s42, s46
    s_add_u32 s43, s56, {sum(1 << p for _, p in ROWP)}""")
    g.deposit(43, 48, [(i, POS[f"s{i}"]) for i in range(3)] + [(3, POS["w0"]), (4, POS["w1"])], 42)
    window(o("dph", 8))
    g(f"""
    s_min_u32 s54, s54, 504
    v_mov_b32 v4, s54
    ds_write_b32 v3, v4 offset:{LANDED}
    s_add_u32 s55, s55, 1
    s_branch L_dyn
    L_dyn_end:""")
    g.lds_wait(4, vF, CONSUMED, 61, 45, 8)

    def vlanded(n):
        g(f"s_waitcnt vmcnt({n})\nds_write_b32 v3, v4 offset:{LANDED}")
        g.ts(2)
        g("s_barrier")
    g(f"""
    v_mov_b32 v4, 512
    s_cmp_lt_u32 s{sSPLIT}, 14
    s_cbranch_scc0 L_ld_not_t1
    ; T1 weights: wo[kvh*512 + 0..511][32*split .. +32] into ring slot 0, 32-byte halves swapped in rows 8..15 of 16""")
    g.srd(sWO, 4096 * 896)
    g(f"""
    v_lshrrev_b32 v5, 2, v0
    v_mul_u32_u24 v5, 896, v5
    v_and_b32 v6, 3, v0
    v_lshlrev_b32 v6, 4, v6
    v_and_b32 v7, 32, v0
    v_xor_b32 v6, v6, v7
    v_add_u32 v5, v6, v5
    s_lshl2_add_u32 s41, s{sKVH}, s{sWAVE}
    s_mul_i32 s41, s41, {128*896}
    s_lshl_b32 s43, s{sSPLIT}, 6
    s_add_u32 s41, s41, s43
    s_lshl_b32 s42, s{sWAVE}, 13
    s_waitcnt vmcnt({o("wv", 4)})""")
    for j in range(8):
        g(f"s_add_u32 m0, s42, {j*1024}\ns_add_u32 s43, s41, {j*16*896}\nbuffer_load_dwordx4 v5, {SRD}, s43 offen nt lds")
    vlanded(8)
    g(f"""
    s_branch L_t1
    L_ld_not_t1:
    s_cmp_lt_u32 s{sU}, 28
    s_cbranch_scc1 L_ld_t2""")
    vlanded(0)
    g.endwave()
    g("""
    L_ld_t2:
    ; T2 weights: w1[0..447][64u .. +64]: 128-B rows, 32-B tiles XOR-swizzled with (row>>1 &1) | (row>>3 &1)<<1""")
    g.srd(sW1, 448 * 3584)
    g(f"""
    v_and_b32 v6, 7, v0
    v_lshlrev_b32 v6, 4, v6
    v_and_b32 v7, 16, v0
    v_lshlrev_b32 v7, 1, v7
    v_xor_b32 v6, v6, v7
    s_and_b32 s43, s{sWAVE}, 1
    s_lshl_b32 s43, s43, 6
    v_xor_b32 v6, s43, v6
    v_xor_b32 v7, 64, v6
    v_lshrrev_b32 v5, 3, v0
    v_mul_u32_u24 v5, 3584, v5
    v_add_u32 v6, v6, v5
    v_add_u32 v7, v7, v5
    s_mul_i32 s41, s{sWAVE}, {7*8*3584}
    s_lshl_b32 s43, s{sU}, 7
    s_add_u32 s41, s41, s43
    s_mul_i32 s42, s{sWAVE}, {7*1024}
    s_waitcnt vmcnt({o("wv2", 4)})""")
    for row in range(2):
        for j in range(7):
            idx = row * 28 + j
            g(f"s_add_u32 m0, s42, {idx*1024}\ns_add_u32 s43, s41, {idx*8*3584}\nbuffer_load_dwordx4 v{6 + (j & 1)}, {SRD}, s43 offen nt lds")
        if row == 0:
            vlanded(7)
            g.lds_wait(4, vF, CONSUMED, 65, 45, 8, sleep=0)
    g.srd(sW2, 1792 * 896)
    g(f"""
    s_lshl3_add_u32 s41, s{sU}, s{sWAVE}
    s_mul_i32 s41, s41, {8*896}
    s_mul_i32 s42, s{sWAVE}, {8*928 + 128}
    s_mov_b32 exec_hi, 0x00ffffff""")
    for row in range(2):
        for j in range(8):
            g(f"s_add_u32 m0, s42, {W2L + row*W2KS + j*928}\ns_add_u32 s43, s41, {(row*32 + j)*896}\nbuffer_load_dwordx4 v1, {SRD}, s43 offen nt lds")
    g("s_mov_b32 exec_hi, -1\ns_branch L_t2")

    g("L_notloader:")
    common()
    g(f"""
    v_max_u32 v3, 4, v0
    v_lshl_add_u32 v3, v3, 2, v{vF}
    v_mov_b32 v4, 0
    ds_write_b32 v3, v4
    v_lshrrev_b32 v5, 4, v0
    v_and_b32 v6, 1, v0
    s_cmp_lt_u32 s{sWAVE}, 8
    s_cbranch_scc1 L_consumer
    s_setprio 2
    v_lshrrev_b32 v7, 5, v0
    v_mul_u32_u24 v7, 896, v7
    v_and_b32 v8, 31, v0
    v_lshl_add_u32 v7, v8, 2, v7
    v_lshlrev_b32 v160, 2, v8
    v_lshrrev_b32 v9, 2, v0
    v_lshlrev_b32 v9, 13, v9
    v_and_b32 v10, 3, v0
    v_lshl_add_u32 v9, v10, 4, v9
    s_and_b32 s47, s{sJ}, 1
    s_lshr_b32 s46, s{sJ}, 1
    s_lshl4_add_u32 s46, s{sKVH}, s46
    s_mul_i32 s41, s47, {224 * 8192}
    s_lshl_b32 s43, s46, 6
    s_add_u32 s41, s41, s43
    s_waitcnt lgkmcnt(0)
    s_load_dword s{sEPOCH}, s[{sWS}:{sWS+1}], {WS_EPOCH}""")
    if o("ab", 1) == 0:
        g("s_barrier")
    for j in range(7):
        g(f"global_load_dword v{16+j}, v7, s[{sX}:{sX+1}] offset:{128*j}")
    g.srd(sWQ, 448 * 8192)
    for j in range(14):
        g(f"s_mov_b32 m0, {WQS + j*1024}\ns_add_u32 s43, s41, {j*16*8192}\nbuffer_load_dwordx4 v9, {SRD}, s43 offen nt lds")
    if o("ab", 1) == 1:
        g("s_barrier")
    g(f"; roll call: every workgroup signs the line of (its XCD, its class)\ns_mov_b32 s{sLOC}, 0")
    g.classline(sRC, WS_RC)
    g(f"""
    s_lshl_b32 s43, s{sJ}, 2
    v_mov_b32 v12, s43
    s_waitcnt lgkmcnt(0)
    s_add_u32 s{sTAG}, s{sEPOCH}, 0x{TAGC:08x}
    v_mov_b32 v13, s{sTAG}
    s_mov_b64 exec, 1
    global_store_dword v12, v13, s[{sRC}:{sRC+1}]
    s_mov_b64 exec, -1
    {"s_barrier" if o("ab", 1) == 2 else ""}
    s_waitcnt vmcnt(15)""")
    g.ts(1)
    vx, vmu, vrs, vt = 24, 10, 11, 12
    for j in range(7):
        g(f"v_lshlrev_b32 v{vx+2*j}, 16, v{16+j}\nv_and_b32 v{vx+2*j+1}, 0xffff0000, v{16+j}")
    g(f"v_add_f32 v{vmu}, v{vx}, v{vx+1}\nv_add_f32 v{vt}, v{vx+2}, v{vx+3}")
    for j in range(4, 14, 2):
        g(f"v_add_f32 v{vmu}, v{vmu}, v{vx+j}\nv_add_f32 v{vt}, v{vt}, v{vx+j+1}")
    g(f"v_add_f32 v{vmu}, v{vmu}, v{vt}")
    g.xlane("v_add_f32", vmu, vt, [1, 2, 4, 8], True, False)
    g(f"v_mul_f32 v{vmu}, {f32(1.0/448)}, v{vmu}\nv_sub_f32 v{vt}, v{vx}, v{vmu}\nv_mul_f32 v{vrs}, v{vt}, v{vt}")
    for j in range(1, 14):
        g(f"v_sub_f32 v{vt}, v{vx+j}, v{vmu}\nv_fmac_f32 v{vrs}, v{vt}, v{vt}")
    g.xlane("v_add_f32", vrs, vt, [1, 2, 4, 8], True, False)
    g(f"v_mul_f32 v{vrs}, {f32(1.0/448)}, v{vrs}")
    g.rbf(vrs)
    g(f"v_add_f32 v{vrs}, {f32(1e-5)}, v{vrs}")
    g.rbf(vrs)
    g(f"v_sqrt_f32 v{vrs}, v{vrs}")
    g.rbf(vmu)
    g.rbf(vrs)
    g(f"""
    v_rcp_f32 v{vrs}, v{vrs}
    global_load_dword v161, v160, s[{sRC}:{sRC+1}] sc1
    v_add_u32 v7, {XN}, v7""")
    for j in range(7):
        a, b, r = vx + 2*j, vx + 2*j + 1, 16 + j
        g(f"""
        v_sub_f32 v{a}, v{a}, v{vmu}
        v_sub_f32 v{b}, v{b}, v{vmu}
        v_cvt_pk_bf16_f32 v{r}, v{a}, v{b}
        v_lshlrev_b32 v{a}, 16, v{r}
        v_and_b32 v{b}, 0xffff0000, v{r}
        v_mul_f32 v{a}, v{a}, v{vrs}
        v_mul_f32 v{b}, v{b}, v{vrs}
        v_cvt_pk_bf16_f32 v{r}, v{a}, v{b}
        ds_write_b32 v7, v{r} offset:{128*j}""")

    def rollcall():
        g(f"v_cmp_ne_u32 vcc, s{sTAG}, v161\ns_cmp_eq_u64 vcc, 0\ns_cselect_b32 s{sLOC}, 1, s{sLOC}")
    vXF, vWF, vQA = 40, 68, 124
    g(f"""
    v_mul_u32_u24 v8, 896, v6
    v_lshl_add_u32 v8, v5, 4, v8
    s_mul_i32 s43, s47, 448
    s_add_u32 s43, s43, {XN}
    v_add_u32 v8, s43, v8
    v_bfe_u32 v9, v0, 2, 2
    v_lshl_add_u32 v9, v5, 3, v9
    v_lshlrev_b32 v9, 6, v9
    v_and_b32 v10, 3, v0
    v_lshl_add_u32 v9, v10, 3, v9
    v_add_u32 v9, {WQS}, v9""")
    for st in range(7):
        g(f"ds_read_b128 v[{vXF+4*st}:{vXF+4*st+3}], v8 offset:{64*st}")
    g("s_waitcnt vmcnt(0)")
    g.ts(2)
    for st in range(7):
        for nt in range(2):
            a = vWF + 8*st + 4*nt
            g(f"ds_read_b64_tr_b16 v[{a}:{a+1}], v9 offset:{2048*st + 32*nt}")
            g(f"ds_read_b64_tr_b16 v[{a+2}:{a+3}], v9 offset:{2048*st + 32*nt + 256}")
    g.mask(54, 0xcccc)
    g("s_lshl_b32 s43, s47, 14\ns_lshl_b32 s41, s46, 7\ns_add_u32 s43, s43, s41")
    g.base(60, WS_QP, 43)
    g(f"""
    v_bfe_u32 v10, v0, 1, 1
    v_lshlrev_b32 v10, 6, v10
    v_lshl_add_u32 v10, v6, 15, v10
    v_lshl_add_u32 v10, v5, 4, v10
    v_lshlrev_b32 v11, 3, v5""")
    rollcall()
    g("s_waitcnt lgkmcnt(0)")
    for st in range(7):
        for nt in range(2):
            a, d = vWF + 8*st + 4*nt, vQA + 4*nt
            c = "0" if st == 0 else f"v[{d}:{d+3}]"
            g(f"v_mfma_f32_16x16x32_bf16 v[{d}:{d+3}], v[{a}:{a+3}], v[{vXF+4*st}:{vXF+4*st+3}], {c}")
    g.code(12, 11)
    g(f"v_mov_b32 v4, s{sEPOCH}\nds_write_b32 v{vF}, v4 offset:{EPL}\ns_nop 1")
    for r in range(4):
        g(f"v_cndmask_b32 v{16+r}, v{vQA+r}, v{vQA+4+r}, s[54:55]")
    g("v_bfi_b32 v16, 63, v12, v16\ns_mov_b32 exec_lo, 0x000f000f\ns_mov_b32 exec_hi, 0x000f000f")
    g.store_loc("global_store_dwordx4 v10, v[16:19], s[60:61]")
    g("s_mov_b64 exec, -1")
    g.ts(3)
    g(f"""
    s_lshl_b32 s43, s{sB}, 15
    s_lshl_b32 s41, s{sKVH}, 11
    s_add_u32 s43, s43, s41""")
    g.base(60, WS_QP, 43)
    g("s_add_u32 s56, s60, 16384\ns_addc_u32 s57, s61, 0\nv_and_b32 v11, 3, v0\nv_lshlrev_b32 v11, 3, v11")
    g.code(12, 11)
    g("s_mov_b32 s45, 0")
    g.lds_wait(4, vF, LANDED, o("qd", 24), 45, 24, sleep=2)
    g.gather4([(f"global_load_dwordx4 v[{40+4*k}:{43+4*k}], v1, s[{60 if k < 2 else 56}:{61 if k < 2 else 57}] offset:{1024*(k&1)} sc1", False)
               for k in range(4)], 40, 12, 20, 36, 16, [32, 34, 96, 98], pairs=True)
    g(f"""
    v_cvt_pk_bf16_f32 v20, v20, v21
    v_cvt_pk_bf16_f32 v21, v22, v23
    v_cvt_pk_bf16_f32 v24, v24, v25
    v_cvt_pk_bf16_f32 v25, v26, v27
    v_lshlrev_b32 v8, 3, v0
    v_add_u32 v8, {QL}, v8
    v_mov_b32 v4, 1
    ds_write_b64 v8, v[20:21]
    ds_write_b64 v8, v[24:25] offset:512
    ds_write_b32 v{vF}, v4 offset:{QRDY}
    s_setprio 0""")
    g.ts(4)

    R0, RSTEP, NR = o("r0", 12), o("rstep", 4), o("nr", 12)
    BIAS = o("bias", 30) / 10.0
    g(f"""
    v_and_b32 v22, 3, v0
    v_lshl_add_u32 v22, v22, 2, v{vF}
    s_lshl_b32 s54, s{sTAG}, 12
    s_mov_b32 s46, 0
    s_mov_b32 s40, 0
    s_cmp_lt_u32 s{sU}, 28
    s_cselect_b32 s55, {o("lead", 5)}, 0
    s_cmp_lt_u32 s{sSPLIT}, 14
    s_cselect_b32 s55, 0, s55
    s_lshl_b32 s47, s55, 2
    s_getreg_b32 s43, hwreg(HW_REG_XCC_ID, 0, 1)
    s_lshl_b32 s49, s43, 31
    s_xor_b32 s49, s49, {f32(o("par", 80) / 100.0)}""")
    g.classline(60, WS_PG)
    g(f"""
    s_lshl_b32 s41, s{sJ}, 2
    v_mov_b32 v20, s41
    v_lshlrev_b32 v21, 2, v0
    v_mov_b32 v23, 0x4000
    s_mov_b32 exec_lo, 0
    v_mov_b32 v21, v23
    s_mov_b32 exec_lo, -1
    s_mul_i32 s58, s{sJ}, {RSTEP * 32}
    s_add_u32 s58, s58, {R0 * 32}
    s_cmp_eq_u32 s{sKVH}, 0
    s_cselect_b32 s43, 0, {o("mar", 48)}
    s_sub_u32 s58, s58, s43
    s_cmp_lt_u32 s{sJ}, {NR}
    s_cselect_b32 s58, s58, 0x7fffffff
    s_sub_u32 s59, 0, s47
    s_mov_b32 s1, 0
    s_movk_i32 s48, {o("mlrow", 36) * 32}
    L_ctl:
    ds_read_b128 v[8:11], v{vF} offset:{LANDED}
    ds_read_b32 v12, v22 offset:{LANDED}
    s_waitcnt lgkmcnt(0)
    v_add3_u32 v8, v8, v9, v10
    v_add_u32 v8, v8, v11
    v_subrev_u32 v12, s55, v12
    v_readfirstlane_b32 s45, v8
    s_cmp_ge_u32 s45, s48
    s_cbranch_scc1 L_ctl_phase
    s_add_u32 s43, s45, s59
    s_cmp_ge_i32 s43, s58
    s_cbranch_scc1 L_ctl_report
    s_cmp_ge_u32 s45, s40
    s_cbranch_scc1 L_ctl_tick
    s_sleep 2""")
    g.retry("L_ctl")
    g(f"""
    s_branch L_ctl_phase
    L_ctl_tick:
    s_add_u32 s40, s45, {o("gper", 16)}
    v_subrev_u32 v8, s47, v8
    v_max_i32 v8, 0, v8
    v_or_b32 v9, s54, v8
    s_mov_b64 exec, 1
    global_store_dword v20, v9, s[60:61]
    s_mov_b64 exec, -1
    s_cmpk_lt_u32 s45, {o("cst", 10) * 32}
    s_cbranch_scc1 L_ctl
    global_load_dword v13, v21, s[60:61] sc1
    v_cvt_f32_i32 v12, v12
    v_subrev_u32 v8, {int(BIAS * 4)}, v8
    s_mov_b32 exec_lo, 0
    v_mov_b32 v8, 2048
    s_mov_b32 exec_lo, -1
    s_waitcnt vmcnt(0)
    v_xor_b32 v13, s54, v13
    v_cmp_lt_u32 vcc, 0xfff, v13
    s_nop 1
    v_cndmask_b32 v13, v13, v8, vcc
    s_nop 0
    v_readlane_b32 s43, v13, 32
    v_min_u32 v13, 0x800, v13""")
    g.xlane("v_add_u32", 13, 14, [1, 2, 4, 8], True, False)
    g(f"""
    s_sub_u32 s43, s43, 2048
    v_cvt_f32_i32 v14, s43
    v_readfirstlane_b32 s59, v13
    v_cvt_f32_u32 v13, v13
    s_lshr_b32 s59, s59, 5
    s_sub_u32 s59, s59, s45
    s_add_u32 s59, s59, {int(BIAS * 4)}
    v_mul_f32 v13, {f32(1 / 128.0)}, v13
    v_sub_f32 v13, v13, v12
    v_add_f32 v13, {f32(BIAS)}, v13
    v_mul_f32 v13, {f32(o("kp", 120) / 100.0)}, v13
    v_fmac_f32 v13, {f32(o("kg", 40) / 400.0)}, v14
    v_add_f32 v13, s49, v13
    v_max_f32 v13, {f32(float(-LAM0))}, v13
    v_min_f32 v13, {f32(float(LAMMAX - LAM0))}, v13
    v_rndne_f32 v13, v13
    v_cvt_i32_f32 v13, v13
    s_mov_b64 exec, 15
    ds_write_b32 v22, v13 offset:{LAM}
    s_mov_b64 exec, -1
    s_branch L_ctl
    L_ctl_report:
    s_add_u32 s41, s58, {5 * 32}
    s_mov_b32 s58, 0x7fffffff
    s_mul_i32 s43, s{sJ}, {9 * 256}""")
    g.base(56, WS_GX, 43)
    g(f"""
    s_mov_b64 exec, 1
    s_cmp_eq_u32 s{sKVH}, 0
    s_cbranch_scc0 L_rep_wait
    v_mov_b32 v9, s{sTAG}
    v_mov_b32 v10, 2048
    global_store_dword v10, v9, s[56:57] sc1
    L_rep_wait:
    s_load_dword s43, s[56:57], 2048 glc
    s_waitcnt lgkmcnt(0)
    ds_read_b128 v[8:11], v{vF} offset:{LANDED}
    s_waitcnt lgkmcnt(0)
    v_add3_u32 v8, v8, v9, v10
    v_add_u32 v8, v8, v11
    v_or_b32 v9, s54, v8
    v_readfirstlane_b32 s45, v8
    global_store_dword v20, v9, s[60:61]
    s_cmp_ge_u32 s45, s41
    s_cbranch_scc1 L_rep_end
    s_cmp_eq_u32 s43, s{sTAG}
    s_cbranch_scc0 L_rep_wait
    s_add_u32 s42, s45, s59
    s_or_b32 s43, s42, s54
    v_mov_b32 v9, s43
    s_lshl_b32 s43, s{sKVH}, 8
    v_mov_b32 v10, s43
    global_store_dword v10, v9, s[56:57] sc1
    s_mov_b32 s44, 24
    L_rep_read:
    s_sub_u32 s44, s44, 1
    s_cbranch_scc1 L_rep_end""")
    rr = [96, 97, 98, 99, 100, 101, 32, 33]
    for j in range(8):
        g(f"s_load_dword s{rr[j]}, s[56:57], {256*j} glc")
    g("s_waitcnt lgkmcnt(0)\ns_mov_b32 s43, 0\ns_mov_b32 s41, 0")
    for j in range(8):
        g(f"s_xor_b32 s{rr[j]}, s{rr[j]}, s54\ns_add_u32 s43, s43, s{rr[j]}\ns_or_b32 s41, s41, s{rr[j]}")
    g(f"""
    s_cmpk_lt_u32 s41, 0x1000
    s_cbranch_scc0 L_rep_read
    s_lshr_b32 s43, s43, 3
    s_sub_u32 s43, s43, s42
    s_max_i32 s43, s43, -64
    s_min_i32 s43, s43, 64
    s_add_u32 s43, s43, 2048
    s_or_b32 s43, s43, s54
    v_mov_b32 v9, s43
    global_store_dword v23, v9, s[60:61]
    L_rep_end:
    s_mov_b64 exec, -1
    s_branch L_ctl
    L_ctl_phase:
    s_cmp_eq_u32 s1, 1
    s_cbranch_scc1 L_phase1
    s_cmp_eq_u32 s1, 2
    s_cbranch_scc1 L_aux_end
    global_load_dword v161, v160, s[{sRC}:{sRC+1}] sc1
    v_mov_b32 v16, -1
    v_mov_b32 v17, -1
    v_mov_b32 v18, -1
    v_mov_b32 v19, -1
    s_lshl_b32 s43, s{sREG}, 10
    s_add_u32 s43, s43, {WS_OP}
    v_add_u32 v10, s43, v1
    s_waitcnt vmcnt(0)""")
    rollcall()
    g.store_loc(f"global_store_dwordx4 v10, v[16:19], s[{sWS}:{sWS+1}]")
    g(f"v_mov_b32 v4, s{sLOC}\nds_write_b32 v{vF}, v4 offset:{LOCF}")
    g.lds_wait(4, vF, STAGE, 3, 46, 8)
    g(f"""
    v_lshl_add_u32 v15, v6, 4, v{vF}
    ds_read_b128 v[8:11], v15 offset:{STATM}
    ds_read_b128 v[24:27], v15 offset:{STATL}
    s_lshl_b32 s43, s{sREG}, 7""")
    g.base(56, WS_ML, 43)
    g(f"""
    v_mov_b32 v17, s{sTAG}
    v_mov_b32 v19, s{sTAG}
    s_waitcnt lgkmcnt(0)
    v_max3_f32 v16, v8, v9, v10
    v_max_f32 v16, v16, v11
    v_add_f32 v24, v24, v25
    v_add_f32 v26, v26, v27
    v_add_f32 v18, v24, v26
    s_mov_b64 exec, 0xff
    s_waitcnt vmcnt(0)""")
    g.store_loc("global_store_dwordx4 v1, v[16:19], s[56:57]")
    g(f"""
    s_mov_b64 exec, -1
    s_add_u32 s48, s{sJ}, 7
    s_and_b32 s48, s48, 7
    s_lshl_b32 s48, s48, 6
    s_add_u32 s48, s48, {42 * 32}
    s_mov_b32 s1, 1
    s_branch L_ctl
    L_phase1:
    s_lshl_b32 s43, s{sGRP}, 11""")
    g.base(56, WS_ML, 43)
    g(f"""
    v_and_b32 v16, 15, v0
    v_lshlrev_b32 v15, 7, v16
    v_and_b32 v17, 1, v5
    v_lshl_add_u32 v15, v17, 4, v15
    s_mov_b32 exec_hi, 0
    L_ml:
    global_load_dwordx4 v[24:27], v15, s[56:57] sc1
    s_waitcnt vmcnt(0)
    v_xor_b32 v25, s{sTAG}, v25
    v_xor_b32 v27, s{sTAG}, v27
    v_or_b32 v25, v25, v27
    v_cmp_ne_u32 vcc, 0, v25
    s_cmp_eq_u64 vcc, 0
    s_cbranch_scc1 L_ml_done
    s_sleep 4""")
    g.retry("L_ml")
    g("L_ml_done:\nv_mov_b32 v25, v24")
    g.xlane("v_max_f32", 25, 27, [1, 2, 4, 8], False, False)
    g(f"""
    v_sub_f32 v24, v24, v25
    v_mul_f32 v24, {f32(LOG2E_16)}, v24
    v_exp_f32 v24, v24
    s_nop 0
    v_mul_f32 v26, v24, v26""")
    g.xlane("v_add_f32", 26, 27, [1, 2, 4, 8], False, False)
    g(f"""
    v_rcp_f32 v26, v26
    v_lshl_add_u32 v17, v17, 2, v{vF}
    v_mul_f32 v24, v24, v26
    v_cmp_eq_u32 vcc, s{sSPLIT}, v16
    v_mov_b32 v4, 1
    s_mov_b32 exec_lo, vcc_lo
    ds_write_b32 v17, v24 offset:{WT}
    ds_write_b32 v{vF}, v4 offset:{WRDY}
    s_mov_b64 exec, -1""")
    if o("pf2", 1):
        g(f"""
        v_lshlrev_b32 v16, 7, v0
        v_min_u32 v16, L_code_end-L_tail-4, v16
        v_add_u32 v16, L_tail-L_pc0, v16
        global_load_dword v167, v16, s[62:63]""")
    g(f"""
    s_movk_i32 s48, {62 * 32}
    s_mov_b32 s1, 2
    s_branch L_ctl
    L_aux_end:""")
    g.endwave()

    sC, sSEEN, sSTG = 47, 45, 46
    vQ, vS, vD, vA = 16, 48, 64, 68
    vPRE = [68, 100, 132]
    g(f"""
    L_consumer:
    s_sub_u32 s{sC}, s{sWAVE}, 4
    s_lshl_b32 s43, s{sC}, 2
    v_add_u32 v3, s43, v{vF}
    s_mov_b32 s{sSEEN}, 0
    s_mov_b32 s{sSTG}, 0
    v_and_b32 v8, 7, v0
    v_mul_u32_u24 v8, {PAIR}, v8
    v_bfe_u32 v9, v0, 3, 1
    v_lshl_add_u32 v8, v9, 9, v8
    v_lshl_add_u32 v8, v5, 4, v8
    s_mul_i32 s43, s{sC}, {TILE}
    v_add_u32 v9, s43, v8
    s_waitcnt lgkmcnt(0)
    s_barrier
    ; the first three K tiles move from the ring into registers while q is on its way""")
    for t in range(3):
        g.lds_wait(1, 3, LANDED, 8 * (t + 1), sSEEN, 10)
        g(f"v_add_u32 v8, {t * SLOT}, v9\nv_mov_b32 v4, {t+1}")
        for i in range(8):
            g(f"ds_read_b128 v[{vPRE[t]+4*i}:{vPRE[t]+4*i+3}], v8 offset:{64*i}")
        g(f"ds_write_b32 v3, v4 offset:{CONSUMED}")
    g.lds_wait(1, vF, QRDY, 1, sSTG, 8)
    g(f"v_lshlrev_b32 v8, 9, v6\nv_lshl_add_u32 v8, v5, 4, v8\nv_add_u32 v8, {QL}, v8")
    for i in range(8):
        g(f"ds_read_b128 v[{vQ+4*i}:{vQ+4*i+3}], v8 offset:{64*i}")
    g(f"s_mov_b32 s40, 3\ns_mov_b32 s42, {3 * SLOT}\ns_waitcnt lgkmcnt(0)")
    g.mask(48, 0x0003)

    def scores(src, G, wait):
        for i in range(8):
            c = "0" if i == 0 else f"v[{vD}:{vD+3}]"
            if wait:
                g(f"s_waitcnt lgkmcnt({8-i})")
            g(f"v_mfma_f32_16x16x32_bf16 v[{vD}:{vD+3}], v[{src+4*i}:{src+4*i+3}], v[{vQ+4*i}:{vQ+4*i+3}], {c}")
        g("s_nop 7")
        for r in range(4):
            g(f"v_cndmask_b32 v{vS+4*G+r}, v{vS+4*G+r}, v{vD+r}, s[48:49]")
        g("s_lshl_b64 s[48:49], s[48:49], 2")
    for t in range(3):
        scores(vPRE[t], 0, False)
    nextslot = f"s_add_u32 s42, s42, {SLOT}\ns_cmp_eq_u32 s42, {RING_END}\ns_cselect_b32 s42, 0, s42"
    for G in range(4):
        top = g.lab("krow")
        if G:
            g.mask(48, 0x0003)
        g(f"{top}:\ns_add_u32 s40, s40, 1\ns_lshl_b32 s41, s40, 3")
        g.lds_wait(1, 3, LANDED, "s41", sSEEN, 10)
        g("v_add_u32 v8, s42, v9\nv_mov_b32 v4, s40")
        for i in range(8):
            g(f"ds_read_b128 v[{vA+4*i}:{vA+4*i+3}], v8 offset:{64*i}")
        g(f"ds_write_b32 v3, v4 offset:{CONSUMED}\n{nextslot}")
        scores(vA, G, True)
        g(f"s_and_b32 s43, s40, 7\ns_cbranch_scc1 {top}")
    g.ts(5)
    for i in range(8):
        g(f"v_cvt_pk_bf16_f32 v{vA+i}, v{vS+2*i}, v{vS+2*i+1}")
    for i in range(8):
        g(f"v_lshlrev_b32 v{vS+2*i}, 16, v{vA+i}\nv_and_b32 v{vS+2*i+1}, 0xffff0000, v{vA+i}")
    vM, vL = 12, 13
    g(f"v_max3_f32 v{vM}, v{vS}, v{vS+1}, v{vS+2}")
    for i in range(3, 15, 2):
        g(f"v_max3_f32 v{vM}, v{vM}, v{vS+i}, v{vS+i+1}")
    g(f"v_max_f32 v{vM}, v{vM}, v{vS+15}")
    g.xlane("v_max_f32", vM, 10, [2, 4, 8], True, True)
    g(f"""
    v_lshl_add_u32 v14, v6, 4, v3
    v_lshl_add_u32 v15, v6, 4, v{vF}
    v_mov_b32 v4, 2
    ds_write_b32 v14, v{vM} offset:{STATM}
    ds_write_b32 v3, v4 offset:{STAGE}""")
    g.lds_wait(4, vF, STAGE, 2, sSTG, 16)
    g(f"""
    ds_read_b128 v[16:19], v15 offset:{STATM}
    s_mov_b32 s43, {f32(LOG2E_16)}
    s_waitcnt lgkmcnt(0)
    v_max3_f32 v{vM}, v16, v17, v18
    v_max_f32 v{vM}, v{vM}, v19""")
    for i in range(16):
        g(f"v_sub_f32 v{vS+i}, v{vS+i}, v{vM}")
    for i in range(16):
        g(f"v_mul_f32 v{vS+i}, s43, v{vS+i}")
    for i in range(16):
        g(f"v_exp_f32 v{vS+i}, v{vS+i}")
    g(f"v_add_f32 v{vL}, v{vS}, v{vS+1}\nv_add_f32 v10, v{vS+2}, v{vS+3}")
    for i in range(4, 16, 2):
        g(f"v_add_f32 v{vL}, v{vL}, v{vS+i}\nv_add_f32 v10, v10, v{vS+i+1}")
    g(f"v_add_f32 v{vL}, v{vL}, v10")
    g.xlane("v_add_f32", vL, 10, [2, 4, 8], True, True)
    for i in range(8):
        g(f"v_cvt_pk_bf16_f32 v{vA+i}, v{vS+2*i}, v{vS+2*i+1}")
    g(f"""
    v_bfe_u32 v8, v0, 1, 3
    v_lshlrev_b32 v8, 8, v8
    v_lshl_add_u32 v8, v6, 6, v8
    v_lshl_add_u32 v8, v5, 4, v8
    s_lshr_b32 s43, s{sC}, 1
    s_lshl_b32 s43, s43, 7
    s_and_b32 s41, s{sC}, 1
    s_lshl3_add_u32 s43, s41, s43
    s_add_u32 s43, s43, {PBUF}
    v_add_u32 v8, s43, v8
    v_mov_b32 v4, 3
    ds_write_b32 v14, v{vL} offset:{STATL}""")
    for G in range(4):
        g(f"ds_write_b64 v8, v[{vA+2*G}:{vA+2*G+1}] offset:{G*2048}")
    vP, vO, vMB, vWt = 32, 100, 116, 14
    g(f"""
    ds_write_b32 v3, v4 offset:{STAGE}
    v_bfe_u32 v8, v0, 2, 3
    v_mul_u32_u24 v8, {PAIR}, v8
    v_lshrrev_b32 v9, 5, v0
    v_lshl_add_u32 v8, v9, 9, v8
    v_and_b32 v9, 3, v0
    v_lshl_add_u32 v8, v9, 3, v8
    s_lshl_b32 s43, s{sC}, 7
    v_add_u32 v9, s43, v8
    v_lshlrev_b32 v11, 6, v6
    v_lshl_add_u32 v11, v5, 4, v11
    v_add_u32 v11, {PBUF}, v11
    s_mov_b32 s{sSEEN}, 0""")
    for r in range(16):
        g(f"v_mov_b32 v{vO+r}, 0")
    g.lds_wait(4, vF, STAGE, 3, sSTG, 16)
    g.ts(6)

    def vreads(pr):
        for T in range(4):
            a = vA + 16*pr + 4*T
            g(f"ds_read_b64_tr_b16 v[{a}:{a+1}], v8 offset:{(2*pr)*TILE + 32*T}")
            g(f"ds_read_b64_tr_b16 v[{a+2}:{a+3}], v8 offset:{(2*pr+1)*TILE + 32*T}")
    g("L_vrow:\ns_add_u32 s40, s40, 1\ns_lshl_b32 s41, s40, 3")
    g.lds_wait(4, vF, LANDED, "s41", sSEEN, 16)
    g("v_add_u32 v8, s42, v9\nv_mov_b32 v4, s40")
    for pr in range(2):
        g(f"ds_read_b128 v[{vP+4*pr}:{vP+4*pr+3}], v11 offset:{128*pr}")
        vreads(pr)
    g(f"ds_write_b32 v3, v4 offset:{CONSUMED}\nv_add_u32 v11, 256, v11\n{nextslot}")
    for pr in range(2):
        for T in range(4):
            a = vA + 16*pr + 4*T
            g(f"s_waitcnt lgkmcnt({min(19 - (9*pr + 1 + 2*(T+1)), 15)})")
            g(f"v_mfma_f32_16x16x32_bf16 v[{vO+4*T}:{vO+4*T+3}], v[{a}:{a+3}], v[{vP+4*pr}:{vP+4*pr+3}], v[{vO+4*T}:{vO+4*T+3}]")
    g(f"""
    s_cmp_lt_u32 s40, 63
    s_cbranch_scc1 L_vrow
    L_tail:
    s_mov_b32 s{sSTG}, 0""")
    g.lds_wait(1, vF, WRDY, 1, sSTG, 16)
    g(f"""
    v_lshl_add_u32 v15, v6, 2, v{vF}
    ds_read_b32 v{vWt}, v15 offset:{WT}
    ds_read_b32 v16, v{vF} offset:{LOCF}
    ds_read_b128 v[{vP}:{vP+3}], v11
    ds_read_b128 v[{vP+4}:{vP+7}], v11 offset:128
    v_add_u32 v8, s42, v9""")
    g.mask(48, 0x0303); g.mask(54, 0x0c0c); g.mask(56, 0x3030); g.mask(58, 0xc0c0)
    g(f"s_lshl_b32 s43, s{sREG}, 10\ns_lshl_b32 s41, s{sC}, 7\ns_add_u32 s43, s43, s41")
    g.base(60, WS_OP, 43)
    g(f"""
    v_bfe_u32 v15, v0, 1, 2
    v_lshlrev_b32 v15, 5, v15
    v_lshl_add_u32 v15, v6, 9, v15
    v_lshl_add_u32 v15, v5, 3, v15
    s_waitcnt lgkmcnt(0)
    v_readfirstlane_b32 s{sLOC}, v16""")
    for pr in range(2):
        for T in range(4):
            m = [48, 54, 56, 58][T]
            for r in range(4):
                g(f"v_cndmask_b32 v{vMB+16*pr+4*T+r}, 0, v{vP+4*pr+r}, s[{m}:{m+1}]")
    g.select4(16, vO, 54)
    g("v_mov_b32 v4, 65\ns_barrier")
    vreads(0)
    vreads(1)
    for i in range(8):
        g(f"s_waitcnt lgkmcnt({14-2*i})")
        g(f"v_mfma_f32_16x16x32_bf16 v[16:19], v[{vA+4*i}:{vA+4*i+3}], v[{vMB+4*i}:{vMB+4*i+3}], v[16:19]")
    g.ts(7)
    g(f"""
    s_mov_b32 exec_lo, 0x00ff00ff
    s_mov_b32 exec_hi, 0x00ff00ff
    s_nop 5
    v_mul_f32 v16, v16, v{vWt}
    v_mul_f32 v17, v17, v{vWt}
    v_mul_f32 v18, v18, v{vWt}
    v_mul_f32 v19, v19, v{vWt}
    v_cvt_pk_bf16_f32 v16, v16, v17
    v_cvt_pk_bf16_f32 v17, v18, v19""")
    g.store_loc("global_store_dwordx2 v15, v[16:17], s[60:61]")
    g(f"""
    s_mov_b64 exec, -1
    ds_write_b32 v3, v4 offset:{CONSUMED}
    s_cmp_lt_u32 s{sSPLIT}, 14
    s_cbranch_scc1 L_t1
    s_cmp_lt_u32 s{sU}, 28
    s_cbranch_scc1 L_t2""")
    g.endwave()

    EK = o("ek", 4)
    g(f"""
    L_t1:
    s_setprio 0
    ds_read_b32 v48, v{vF} offset:{EPL}
    v_lshrrev_b32 v5, 4, v0
    v_bfe_u32 v8, v0, 2, 2
    v_lshl_add_u32 v8, v5, 3, v8
    v_lshlrev_b32 v8, 6, v8
    v_and_b32 v53, 3, v0
    v_lshl_add_u32 v8, v53, 3, v8
    s_lshl_b32 s43, s{sWAVE}, 12
    v_add_u32 v8, s43, v8
    v_and_b32 v9, 1, v5
    v_lshl_add_u32 v8, v9, 5, v8
    v_xor_b32 v7, 32, v8
    v_and_b32 v9, 15, v0
    v_lshrrev_b32 v58, 3, v0
    v_and_b32 v59, 7, v0
    v_xor_b32 v10, v58, v59
    v_lshlrev_b32 v10, 4, v10
    v_lshl_add_u32 v10, v58, 10, v10
    v_add_u32 v11, 8192, v10
    v_xor_b32 v59, v59, v5
    v_lshlrev_b32 v59, 4, v59
    v_lshl_add_u32 v59, v9, 7, v59
    s_lshl_b32 s40, s{sWAVE}, 11
    s_add_u32 s40, s40, {SLOT}
    s_add_u32 s42, s40, 1024
    v_add_u32 v59, s40, v59
    v_xor_b32 v58, 64, v59
    s_lshl_b32 s43, s{sGRP}, 14
    s_lshl_b32 s41, s{sWAVE}, 7
    s_add_u32 s43, s43, s41""")
    g.base(60, WS_OP, 43)
    oload = """
    s_mov_b32 m0, s40
    s_nop 0
    global_load_lds_dwordx4 v10, s[60:61] sc1
    s_mov_b32 m0, s42
    s_nop 0
    global_load_lds_dwordx4 v11, s[60:61] sc1"""
    g(f"""
    s_cmp_lt_u32 s{sWAVE}, 4
    s_cbranch_scc0 L_t1_go
    s_waitcnt vmcnt({EK})
    L_t1_go:
    s_barrier
    {oload}
    v_lshrrev_b32 v12, 5, v0
    v_lshl_add_u32 v12, v12, 4, v9
    v_lshlrev_b32 v12, 5, v12
    s_lshl2_add_u32 s43, s{sWAVE}, {RED}
    v_add_u32 v12, s43, v12
    s_lshl1_add_u32 s43, s{sKVH}, s{sB}
    s_mul_i32 s43, s43, 1792
    s_lshl_b32 s41, s{sSPLIT}, 7
    s_add_u32 s43, s43, s41""")
    g.base(58, WS_A1, 43)
    g(f"""
    v_and_b32 v13, 31, v0
    v_lshlrev_b32 v14, 5, v13
    v_add_u32 v14, {RED}, v14
    v_lshlrev_b32 v13, 2, v13
    v_lshlrev_b32 v49, 1, v9
    v_cmp_eq_u32 vcc, 0, v53
    s_waitcnt lgkmcnt(0)
    v_readfirstlane_b32 s{sEPOCH}, v48
    v_cndmask_b32 v53, 0, 63, vcc""")
    g.code(48, 49)
    g.classline(62, WS_PG)
    g(f"""
    s_add_u32 s43, s{sEPOCH}, 0x{TAGC:08x}
    s_lshl_b32 s43, s43, 12
    s_or_b32 s43, s43, 0xfff
    v_mov_b32 v51, s43
    s_lshl_b32 s43, s{sJ}, 2
    v_mov_b32 v52, s43
    s_waitcnt vmcnt(2)
    s_barrier""")
    g.ts(8)
    for ks in range(2):
        for nt in range(2):
            a = 32 + 8*ks + 4*nt
            g(f"ds_read_b64_tr_b16 v[{a}:{a+1}], v{8-nt} offset:{ks*2048}")
            g(f"ds_read_b64_tr_b16 v[{a+2}:{a+3}], v{8-nt} offset:{ks*2048 + 256}")
    g(f"""
    L_t1_poll:
    s_waitcnt vmcnt(0)
    ds_read_b128 v[16:19], v59
    ds_read_b128 v[20:23], v58
    s_waitcnt lgkmcnt(1)
    v_mfma_f32_16x16x32_bf16 v[24:27], v[16:19], v[32:35], 0
    v_max3_u32 v50, v16, v17, v18
    v_mfma_f32_16x16x32_bf16 v[28:31], v[16:19], v[36:39], 0
    s_waitcnt lgkmcnt(0)
    v_max3_u32 v50, v50, v19, v20
    v_mfma_f32_16x16x32_bf16 v[24:27], v[20:23], v[40:43], v[24:27]
    v_max3_u32 v50, v50, v21, v22
    v_mfma_f32_16x16x32_bf16 v[28:31], v[20:23], v[44:47], v[28:31]
    v_max_u32 v50, v50, v23
    v_cmp_eq_u32 vcc, -1, v50
    s_cmp_eq_u64 vcc, 0
    s_cbranch_scc1 L_t1_have
    {oload}""")
    g.retry("L_t1_poll")
    g("L_t1_have:")
    g.ts(9)
    g(f"""
    s_nop 1
    v_add_f32 v24, v24, v25
    v_add_f32 v26, v26, v27
    v_add_f32 v28, v28, v29
    v_add_f32 v30, v30, v31
    v_add_f32 v24, v24, v26
    v_add_f32 v28, v28, v30
    s_nop 1
    v_permlane32_swap_b32 v24, v28
    v_add_f32 v24, v24, v28
    v_mov_b32 v25, v24
    s_nop 1
    v_permlane16_swap_b32 v24, v25
    v_add_f32 v24, v24, v25
    ds_write_b32 v12, v24
    s_cmp_eq_u32 s{sWAVE}, 0
    s_waitcnt lgkmcnt(0)
    s_barrier
    s_cbranch_scc0 L_t1_end
    ds_read_b128 v[16:19], v14
    ds_read_b128 v[20:23], v14 offset:16
    s_mov_b64 exec, 1
    global_store_dword v52, v51, s[62:63]
    s_mov_b32 exec_lo, -1
    s_waitcnt lgkmcnt(0)
    v_pk_add_f32 v[16:17], v[16:17], v[18:19]
    v_pk_add_f32 v[20:21], v[20:21], v[22:23]
    v_pk_add_f32 v[16:17], v[16:17], v[20:21]
    v_add_f32 v16, v16, v17
    v_bfi_b32 v16, v53, v48, v16
    global_store_dword v13, v16, s[58:59] sc1
    s_mov_b64 exec, -1
    L_t1_end:""")
    g.ts(10)
    g.endwave()

    vW1, vW2 = 64, 120
    g(f"""
    L_t2:
    s_setprio 0
    v_lshrrev_b32 v5, 4, v0
    v_and_b32 v6, 1, v0""")
    g.get_epoch(48)
    g(f"""
    s_cmp_eq_u32 s{sWAVE}, 7
    s_cbranch_scc1 L_fin
    v_and_b32 v7, 1, v5
    v_mul_u32_u24 v10, 896, v7
    v_and_b32 v11, 15, v0
    v_lshl_add_u32 v10, v11, 3, v10
    s_lshl_b32 s43, s{sWAVE}, 7
    v_add_u32 v10, s43, v10
    v_lshrrev_b32 v16, 5, v0
    v_mul_u32_u24 v11, 3584, v16
    v_lshl_add_u32 v11, v10, 1, v11
    v_add_u32 v15, 7168, v11
    v_lshl_add_u32 v10, v16, 2, v10
    global_load_dword v14, v10, s[{sX}:{sX+1}]
    v_add_u32 v153, {XN}, v10
    v_add_u32 v10, {HB}, v10
    v_lshlrev_b32 v7, 6, v7
    v_add_u32 v7, {RED}, v7
    s_lshl_b32 s43, s{sWAVE}, 2
    v_add_u32 v152, s43, v7
    v_lshl_add_u32 v152, v16, 5, v152
    v_bfe_u32 v16, v0, 1, 2
    s_and_b32 s41, s{sWAVE}, 3
    s_lshl_b32 s41, s41, 5
    v_lshlrev_b32 v3, 3, v5
    v_lshl_add_u32 v3, v16, 1, v3
    v_add_u32 v3, s41, v3
    s_lshl_b32 s43, s{sU}, 7
    v_add_u32 v17, s43, v3
    global_load_ushort v60, v17, s[{sB1}:{sB1+1}]
    v_lshl_add_u32 v3, v6, 7, v3
    v_add_u32 v3, {FB}, v3
    v_mul_u32_u24 v8, 1792, v6
    v_lshl_add_u32 v8, v16, 6, v8
    v_lshl_add_u32 v8, v5, 4, v8
    v_mul_u32_u24 v9, 896, v6
    v_lshl_add_u32 v9, v5, 4, v9
    v_add_u32 v9, {XN}, v9
    v_bfe_u32 v16, v0, 2, 2
    v_lshl_add_u32 v16, v5, 3, v16
    v_and_b32 v17, 3, v0
    v_lshlrev_b32 v17, 3, v17
    v_bfe_u32 v18, v0, 3, 2
    v_lshlrev_b32 v18, 5, v18
    v_xor_b32 v18, s41, v18
    v_lshl_add_u32 v12, v16, 7, v17
    v_add_u32 v12, v12, v18
    v_mul_u32_u24 v13, 928, v16
    v_lshl_add_u32 v13, v5, 7, v13
    v_add_u32 v13, v13, v17
    s_lshl_b32 s43, s{sWAVE}, 7
    s_add_u32 s43, s43, {W2L}
    v_add_u32 v13, s43, v13
    v_lshlrev_b32 v33, 3, v5""")
    g.code(1, 33)
    g.code(34, 17)
    g.mask(54, 0x0c0c); g.mask(56, 0x3030); g.mask(58, 0xc0c0)
    g(f"""
    v_lshlrev_b32 v4, 7, v6
    v_lshl_add_u32 v4, v5, 4, v4
    v_add_u32 v4, {FB}, v4
    s_mul_i32 s43, s{sU}, {YSTR}
    s_lshl_b32 s41, s{sWAVE}, 8
    s_add_u32 s43, s43, s41""")
    g.base(48, WS_Y2, 43)
    g.base(60, WS_A1)
    g.base(62, WS_A1 + 4 * 3584)
    g(f"""
    s_waitcnt vmcnt(0)
    v_lshlrev_b32 v60, 16, v60
    v_lshlrev_b32 v38, 16, v14
    v_and_b32 v39, 0xffff0000, v14
    s_barrier""")
    g.ts(8)

    def frags():
        g(f"s_cmp_lt_u32 s{sWAVE}, 4\ns_cbranch_scc0 L_t2_now1")
        for j in range(14):
            a = vW1 + 4*j
            g(f"ds_read_b64_tr_b16 v[{a}:{a+1}], v12 offset:{j*4096}")
            g(f"ds_read_b64_tr_b16 v[{a+2}:{a+3}], v12 offset:{j*4096 + 512}")
        g("L_t2_now1:")
        for ks in range(2):
            for t in range(4):
                a = vW2 + 16*ks + 4*t
                g(f"ds_read_b64_tr_b16 v[{a}:{a+1}], v13 offset:{ks*W2KS + t*32}")
                g(f"ds_read_b64_tr_b16 v[{a+2}:{a+3}], v13 offset:{ks*W2KS + t*32 + 4*928}")
    g.gather4([(f"global_load_dwordx4 v[{40+4*k}:{43+4*k}], v{11 if (k & 1) == 0 else 15}, s[{60+2*(k//2)}:{61+2*(k//2)}] sc1", False)
               for k in range(4)], 40, 34, 16, 32, 0, [32, 34, 96, 98], after_issue=frags)
    g.ts(9)
    g(f"""
    v_permlane32_swap_b32 v16, v18
    v_permlane32_swap_b32 v17, v19
    v_add_f32 v16, v16, v18
    v_add_f32 v17, v17, v19
    v_cvt_pk_bf16_f32 v16, v16, v17
    v_lshlrev_b32 v20, 16, v16
    v_and_b32 v21, 0xffff0000, v16
    v_add_f32 v18, v38, v20
    v_add_f32 v19, v39, v21
    v_cvt_pk_bf16_f32 v14, v18, v19
    v_lshlrev_b32 v56, 16, v14
    v_and_b32 v57, 0xffff0000, v14
    v_mul_f32 v17, v56, v56
    v_add_f32 v16, v56, v57
    v_fmac_f32 v17, v57, v57
    ds_write_b32 v10, v14""")
    for r in (1, 2, 4, 8):
        g(f"""
        v_add_f32_dpp v16, v16, v16 row_ror:{r} row_mask:0xf bank_mask:0xf
        v_add_f32_dpp v17, v17, v17 row_ror:{r} row_mask:0xf bank_mask:0xf
        s_nop {1 if r == 8 else 0}""")
    g(f"""
    v_permlane32_swap_b32 v16, v17
    v_add_f32 v16, v16, v17
    ds_write_b32 v152, v16
    s_mov_b32 s43, {f32(1.0/448)}
    s_waitcnt lgkmcnt(0)
    s_barrier
    ds_read_b128 v[16:19], v7
    ds_read_b128 v[20:23], v7 offset:16
    ds_read_b128 v[24:27], v7 offset:32
    ds_read_b128 v[28:31], v7 offset:48
    s_waitcnt lgkmcnt(2)
    v_pk_add_f32 v[16:17], v[16:17], v[18:19]
    v_pk_add_f32 v[16:17], v[16:17], v[20:21]
    v_add_f32 v16, v16, v22
    v_add_f32 v40, v16, v17
    s_waitcnt lgkmcnt(0)
    v_pk_add_f32 v[24:25], v[24:25], v[26:27]
    v_mul_f32 v40, s43, v40
    v_pk_add_f32 v[24:25], v[24:25], v[28:29]
    v_mul_f32 v42, v40, v40
    v_add_f32 v24, v24, v30
    v_add_f32 v41, v24, v25
    v_fma_f32 v41, v41, s43, -v42
    v_max_f32 v41, 0, v41
    v_cvt_pk_bf16_f32 v41, v40, v41
    v_lshlrev_b32 v40, 16, v41
    v_and_b32 v41, 0xffff0000, v41
    v_add_f32 v41, {f32(1e-5)}, v41""")
    g.rbf(41)
    g(f"""
    v_sqrt_f32 v41, v41
    v_sub_f32 v56, v56, v40
    v_cvt_pk_bf16_f32 v41, v41, v41
    v_sub_f32 v57, v57, v40
    v_and_b32 v41, 0xffff0000, v41
    v_rcp_f32 v41, v41
    v_cvt_pk_bf16_f32 v14, v56, v57
    v_lshlrev_b32 v56, 16, v14
    v_and_b32 v57, 0xffff0000, v14
    v_mul_f32 v56, v56, v41
    v_mul_f32 v57, v57, v41
    v_cvt_pk_bf16_f32 v14, v56, v57
    ds_write_b32 v153, v14
    s_cmp_lt_u32 s{sWAVE}, 4
    s_waitcnt lgkmcnt(0)
    s_barrier""")
    g.ts(10)
    g("s_cbranch_scc0 L_no_ffn1")
    vHF = [16 + 4*j for j in range(10)] + [152 + 4*j for j in range(4)]
    for j in range(14):
        g(f"ds_read_b128 v[{vHF[j]}:{vHF[j]+3}], v9 offset:{64*j}")
    for j in range(14):
        c = "0" if j == 0 else "v[56:59]"
        g(f"s_waitcnt lgkmcnt({13-j})")
        g(f"v_mfma_f32_16x16x32_bf16 v[56:59], v[{vW1+4*j}:{vW1+4*j+3}], v[{vHF[j]}:{vHF[j]+3}], {c}")
    g(f"""
    s_nop 7
    v_cndmask_b32 v16, v56, v57, s[54:55]
    v_cndmask_b32 v16, v16, v58, s[56:57]
    v_cndmask_b32 v16, v16, v59, s[58:59]
    v_cvt_pk_bf16_f32 v16, v16, v16
    v_and_b32 v16, 0xffff0000, v16
    v_add_f32 v16, v16, v60
    v_cvt_pk_bf16_f32 v16, v16, v16
    v_and_b32 v16, 0xffff0000, v16
    v_max_f32 v16, 0, v16
    v_mul_f32 v16, v16, v16
    v_cvt_pk_bf16_f32 v16, v16, v16
    ds_write_b16 v3, v16
    s_waitcnt lgkmcnt(0)
    L_no_ffn1:
    s_barrier""")
    g("ds_read_b128 v[16:19], v4\nds_read_b128 v[20:23], v4 offset:64\ns_waitcnt lgkmcnt(1)")
    for t in range(4):
        g(f"v_mfma_f32_16x16x32_bf16 v[{32+4*t}:{35+4*t}], v[{vW2+4*t}:{vW2+4*t+3}], v[16:19], 0")
    g("s_waitcnt lgkmcnt(0)")
    for t in range(4):
        g(f"v_mfma_f32_16x16x32_bf16 v[{32+4*t}:{35+4*t}], v[{vW2+16+4*t}:{vW2+16+4*t+3}], v[20:23], v[{32+4*t}:{35+4*t}]")
    g("s_mov_b32 exec_lo, 0x00ff00ff\ns_mov_b32 exec_hi, 0x00ff00ff\ns_nop 3")
    g.select4(16, 32, 54)
    g(f"""
    v_bfi_b32 v16, 63, v1, v16
    global_store_dwordx4 v8, v[16:19], s[48:49] sc1
    s_mov_b64 exec, -1
    s_barrier""")
    g.ts(11)
    g.endwave()

    g(f"""
    L_fin:
    s_cmp_ge_u32 s{sU}, 14
    s_cselect_b32 s41, 14, 0
    s_sub_u32 s41, s{sU}, s41
    s_lshl_b32 s41, s41, 6
    v_and_b32 v10, 7, v0
    v_lshlrev_b32 v10, 3, v10
    v_and_b32 v11, 1, v5
    v_lshl_add_u32 v11, v11, 2, v10
    v_lshrrev_b32 v12, 5, v0
    v_lshl_add_u32 v11, v12, 1, v11
    v_add_u32 v12, s41, v11
    global_load_ushort v40, v12, s[{sB2}:{sB2+1}]
    s_lshl_b32 s43, s{sU}, 6
    v_add_u32 v12, s43, v11
    v_add_u32 v13, {HB}, v12
    v_add_u32 v10, s43, v10
    v_lshrrev_b32 v14, 3, v0
    v_mul_u32_u24 v14, {YSTR}, v14
    v_lshl_add_u32 v14, v10, 1, v14""")
    for i in range(4):
        g.base(54 + 2*i, WS_Y2 + i * 8 * YSTR)
    g("v_and_b32 v33, 3, v0\nv_lshlrev_b32 v33, 3, v33")
    g.code(34, 33)
    g("v_mov_b32 v60, v34\nv_mov_b32 v61, 0\nv_mov_b32 v62, 0\nv_mov_b32 v63, 0")
    g.classline(62, WS_PG)
    g(f"""
    s_add_u32 s44, s{sEPOCH}, 0x{TAGC:08x}
    s_lshl_b32 s44, s44, 12
    v_lshlrev_b32 v44, 2, v0
    s_mov_b32 exec_lo, 0x3fff3fff
    s_mov_b32 exec_hi, 0
    s_mov_b32 s43, 64
    L_hint:
    global_load_dword v45, v44, s[62:63] sc1
    s_waitcnt vmcnt(0)
    v_xor_b32 v45, s44, v45
    v_cmp_gt_u32 vcc, 0xfff, v45
    s_cmp_eq_u64 vcc, 0
    s_cbranch_scc1 L_hint_done
    s_sub_u32 s43, s43, 1
    s_cbranch_scc0 L_hint
    L_hint_done:
    s_mov_b64 exec, -1
    s_barrier
    s_barrier
    ds_read_u16 v41, v13
    s_waitcnt lgkmcnt(0)
    v_lshlrev_b32 v40, 16, v40
    v_lshlrev_b32 v41, 16, v41
    s_barrier
    s_barrier
    s_barrier""")
    g.ts(11)
    g(f"""
    s_sleep {o("fd", 12)}""")
    g.gather4([(f"global_load_dwordx4 v[{48+4*k}:{51+4*k}], v14, s[{54+2*k}:{55+2*k}] sc1", k == 3) for k in range(4)],
              48, 34, 16, 32, 0, [32, 34, 96, 98])
    g.ts(12)
    g(f"""
    v_permlane32_swap_b32 v16, v17
    v_permlane32_swap_b32 v18, v19
    v_add_f32 v16, v16, v17
    v_add_f32 v18, v18, v19
    s_nop 1
    v_permlane16_swap_b32 v16, v18
    v_add_f32 v16, v16, v18
    s_nop 1
    v_add_f32_dpp v16, v16, v16 row_ror:8 row_mask:0xf bank_mask:0xf
    v_cvt_pk_bf16_f32 v16, v16, v16
    v_and_b32 v16, 0xffff0000, v16
    v_add_f32 v16, v16, v40
    v_cvt_pk_bf16_f32 v16, v16, v16
    v_and_b32 v16, 0xffff0000, v16
    v_add_f32 v16, v16, v41
    v_cvt_pk_bf16_f32 v16, v16, v16
    s_mov_b32 exec_lo, 0x00ff00ff
    s_mov_b32 exec_hi, 0x00ff00ff
    global_store_short v12, v16, s[{sOUT}:{sOUT+1}]
    s_cmp_eq_u32 s{sU}, 0
    s_cbranch_scc0 L_fin_end
    s_mov_b64 exec, 1
    s_add_u32 s43, s{sEPOCH}, 1
    v_mov_b32 v17, s43
    v_mov_b32 v18, {WS_EPOCH}
    global_store_dword v18, v17, s[{sWS}:{sWS+1}]
    L_fin_end:""")
    g.ts(13)

    if o("ts"):
        g("L_dump:\ns_waitcnt vmcnt(0) lgkmcnt(0)")
        g.ts(14)
        g(f"""
        s_getreg_b32 s{sTS+30}, hwreg(HW_REG_XCC_ID)
        s_lshl4_add_u32 s43, s2, s{sWAVE}
        s_lshl_b32 s43, s43, 6""")
        g.base(60, WS_TS, 43)
        g("s_mov_b64 exec, 1\nv_mov_b32 v1, 0")
        for k in range(16):
            g(f"v_mov_b32 v16, s{sTS+2*k}\nglobal_store_dword v1, v16, s[60:61] offset:{4*k}")
    g("L_exit:\ns_endpgm\nL_code_end:")

    head = []
    for line in open(f"cdna_kernels/{NAME}.s.ref").read().split("\n"):
        if line.startswith("; @launch"):
            head.append(f"; @launch grid=(256,1,1) block=(576,1,1) lds={LDS_SIZE}")
            break
        head.append(line)
    return "\n".join(head) + DOC + f""".amdgcn_target "amdgcn-amd-amdhsa--gfx950"
.text
.globl {KN}
.p2align 8
.type {KN},@function
{KN}:
""" + "\n".join(g.L) + f"""
.if (L_code_end - L_pc0) < {575 * o("pfs", 24) + 4}
.error "the text warm-up would read past the code"
.endif
.section .rodata,"a"
.p2align 6
.amdhsa_kernel {KN}
  .amdhsa_next_free_vgpr 168
  .amdhsa_next_free_sgpr 102
  .amdhsa_accum_offset 168
  .amdhsa_group_segment_fixed_size 0
  .amdhsa_kernarg_size 104
  .amdhsa_user_sgpr_count 2
  .amdhsa_user_sgpr_kernarg_segment_ptr 1
  .amdhsa_system_sgpr_workgroup_id_x 1
.end_amdhsa_kernel
"""


if __name__ == "__main__":
    opt = {}
    for a in sys.argv[2:]:
        k, v = a.split("=", 1)
        opt[k] = int(v) if v.lstrip("-").isdigit() else v
    open(sys.argv[1], "w").write(gen(opt))
```

```python
import sys, re
src = open(sys.argv[1]).read()
def build(out, anchor, cond, scale, before=False):
    t = src.replace("    s_getpc_b64 s[62:63]\n", "    s_memrealtime s[94:95]\n    s_getpc_b64 s[62:63]\n", 1)
    if anchor:
        rec = f"""    s_waitcnt lgkmcnt(0)
    s_memrealtime s[92:93]
    s_waitcnt lgkmcnt(0)
    s_sub_u32 s92, s92, s94
    v_mov_b32 v166, s92
    v_mov_b32 v165, 160000
    ds_write_b32 v165, v166
"""
        if cond: rec = f"    {cond}\n    s_cbranch_scc0 L_dgx\n" + rec + "L_dgx:\n"
        assert t.count(anchor) >= 1, anchor
        i = t.index(anchor)
        t = t[:i] + (rec + anchor if before else anchor + rec) + t[i+len(anchor):]
    rd = "    v_mov_b32 v165, 160000\n    ds_read_b32 v166, v165\n    s_waitcnt lgkmcnt(0)\n    v_readfirstlane_b32 s92, v166\n" if anchor else "    s_mov_b32 s92, 0\n"
    t = t.replace("L_fin_end:\n", rd + f"    s_min_u32 s92, s92, 20000\n    s_mul_i32 s92, s92, {scale}\n    s_add_u32 s92, s92, 10000\nL_diag:\n    s_memrealtime s[98:99]\n    s_waitcnt lgkmcnt(0)\n    s_sub_u32 s98, s98, s94\n    s_cmp_lt_u32 s98, s92\n    s_cbranch_scc1 L_diag\nL_fin_end:\n", 1)
    t = re.sub(r"lds=\d+", "lds=160512", t)
    open(out, "w").write(t)
build("d0.s", None, None, 0)
build("d1.s", "    s_setprio 3\n", None, 10)
build("d2.s", "    s_cmp_eq_u32 s40, 32\n", "s_cmp_eq_u32 s40, 1", 10, True)
build("d3.s", "    s_cmp_eq_u32 s40, 32\n", "s_cmp_eq_u32 s40, 8", 5, True)
build("d4.s", "L_dyn_end:\n", None, 1)
build("d5.s", "    s_setprio 0\n    ; ---- stream balancing", None, 5, True)
```
